```python
import torch

def _softmax(x, axis=-1):
    return torch.softmax(x, dim=axis)
def _gelu(x):
    return torch.nn.functional.gelu(x, approximate="tanh")
def _silu(x):
    return torch.nn.functional.silu(x)
def _sigmoid(x):
    return torch.sigmoid(x)
def _layernorm(x, axis=-1, eps=1e-5):
    m = x.mean(dim=axis, keepdim=True)
    v = x.var(dim=axis, keepdim=True, unbiased=False)
    return (x - m) / torch.sqrt(v + eps)
def _scatter_add(tgt, idx, src, axis=0):
    return tgt.clone().index_add_(axis, idx, src)
def _segment_sum(src, seg, n):
    out = torch.zeros((n,) + src.shape[1:], dtype=src.dtype)
    return out.index_add_(0, seg, src)
def _pad(x, pw):
    flat = tuple(v for pair in reversed(pw) for v in pair)
    return torch.nn.functional.pad(x, flat)

kernel_name = 'sequential_preLN__gqa_block_cached__glu_gated_glu__decode'

def setup_inputs():

    _w = (lambda a: (lambda t: t.to(torch.bfloat16) if t.is_floating_point() else t)(torch.as_tensor(a)))
    def _A_setup():
        B, Sq, D = 1, 1, 512
        Hq, Hkv, Sk, Dh = 32, 8, 65536, 128
        assert Hq % Hkv == 0, (Hq, Hkv)
        return {
            "x": _w((lambda *s: torch.randn(*s, dtype=torch.bfloat16) * 0.05)(B, Sq, D)),
            "k_cache": _w((lambda *s: torch.randn(*s, dtype=torch.bfloat16) * 3.2)(B, Hkv, Sk, Dh)),
            "v_cache": _w((lambda *s: torch.randn(*s, dtype=torch.bfloat16) * 0.4)(B, Hkv, Sk, Dh)),
            "wq": _w((lambda *s: torch.randn(*s, dtype=torch.bfloat16) * 3.2)(D, Hq * Dh) * (D ** -0.5)),
            "wo": _w((lambda *s: torch.randn(*s, dtype=torch.bfloat16) * 0.4)(Hq * Dh, D) * ((Hq * Dh) ** -0.5)),
        }
    _A_in = _A_setup()

    def _B_setup():
        B, S, D, F = 1, 1, 512, 1792
        return {
            "x": _w((lambda *s: torch.randn(*s, dtype=torch.bfloat16) * 0.05)(B, S, D)),
            "w_gate": _w((lambda *s: torch.randn(*s, dtype=torch.bfloat16) * 0.2)(D, F)),
            "w_up": _w((lambda *s: torch.randn(*s, dtype=torch.bfloat16) * 0.05)(D, F)),
            "w_down": _w((lambda *s: torch.randn(*s, dtype=torch.bfloat16) * 0.05)(F, D)),
        }
    _B_in = _B_setup()

    return {
        "A_x": _A_in["x"],
        "A_k_cache": _A_in["k_cache"],
        "A_v_cache": _A_in["v_cache"],
        "A_wq": _A_in["wq"],
        "A_wo": _A_in["wo"],
        "B_x": _B_in["x"],
        "B_w_gate": _B_in["w_gate"],
        "B_w_up": _B_in["w_up"],
        "B_w_down": _B_in["w_down"],
    }

def reference(A_x, A_k_cache, A_v_cache, A_wq, A_wo, B_x, B_w_gate, B_w_up, B_w_down):
    def _A_ref(x, k_cache, v_cache, wq, wo):
        B, Sq, D = x.shape
        Hq, Dh = 32, 128
        Hkv = k_cache.shape[1]
        rep = Hq // Hkv
        q = (lambda x, *d: x.permute(*d))((x @ wq).reshape(B, Sq, Hq, Dh), 0, 2, 1, 3)
        k = (lambda x, n, axis: torch.repeat_interleave(x, n, dim=axis))(k_cache, rep, axis=1)
        v = (lambda x, n, axis: torch.repeat_interleave(x, n, dim=axis))(v_cache, rep, axis=1)
        scores = torch.einsum("bhqd,bhkd->bhqk", q, k) * (Dh ** -0.5)
        p = _softmax(scores, axis=-1)
        o = torch.einsum("bhqk,bhkd->bhqd", p, v)
        return (lambda x, *d: x.permute(*d))(o, 0, 2, 1, 3).reshape(B, Sq, Hq * Dh) @ wo

    def _B_ref(x, w_gate, w_up, w_down):
        g = torch.einsum("bsd,df->bsf", x, w_gate)
        u = torch.einsum("bsd,df->bsf", x, w_up)
        h = _sigmoid(g) * u
        return torch.einsum("bsf,fd->bsd", h, w_down)

    x = A_x
    h = x + _A_ref(_layernorm(x, axis=-1), A_k_cache, A_v_cache, A_wq, A_wo)
    h2 = h + _B_ref(_layernorm(h, axis=-1), B_w_gate, B_w_up, B_w_down)
    return h2
```

```python
import re

TRANS = ("v_exp_f32", "v_log_f32", "v_rcp_f32", "v_rsq_f32", "v_sqrt_f32", "v_sin_f32", "v_cos_f32",
         "v_rcp_iflag_f32")


def _regs(tok):
    tok = tok.strip()
    neg = tok.startswith("-")
    if neg:
        tok = tok[1:]
    if tok.startswith("abs(") and tok.endswith(")"):
        tok = tok[4:-1]
    if tok.startswith("|") and tok.endswith("|"):
        tok = tok[1:-1]
    m = re.fullmatch(r"([vas])\[(\d+):(\d+)\]", tok)
    if m:
        return [f"{m.group(1)}{i}" for i in range(int(m.group(2)), int(m.group(3)) + 1)]
    m = re.fullmatch(r"([vas])(\d+)", tok)
    if m:
        return [tok]
    if tok == "vcc":
        return ["vcc_lo", "vcc_hi"]
    if tok in ("vcc_lo", "vcc_hi", "m0", "exec_lo", "exec_hi"):
        return [tok]
    if tok == "exec":
        return ["exec_lo", "exec_hi"]
    return []


def _split_ops(s):
    ops, depth, cur = [], 0, ""
    for ch in s:
        if ch in "[(":
            depth += 1
        if ch in "])":
            depth -= 1
        if ch == "," and depth == 0:
            ops.append(cur.strip())
            cur = ""
        else:
            cur += ch
    if cur.strip():
        ops.append(cur.strip())
    return ops


class Ins:
    __slots__ = ("op", "kind", "w", "r", "rA", "rC", "passes", "dpp", "perm", "rdlane", "trans", "sdwa",
                 "wide_store", "store_data", "ldsdma", "slots", "lanesel", "vmem_sregs")


def parse(text):
    t = text.split(";")[0].strip()
    parts = t.split(None, 1)
    op = parts[0]
    rest = parts[1] if len(parts) > 1 else ""
    ops = _split_ops(rest)
    mods = ""
    if ops:
        last = ops[-1]
        mm = re.match(r"^(\S+)\s+(.*)$", last)
        if mm and not last.startswith("quad_perm"):
            ops[-1] = mm.group(1)
            mods = mm.group(2)
    i = Ins()
    i.op = op
    i.w, i.r, i.rA, i.rC = set(), set(), set(), set()
    i.passes = 0
    i.dpp = ("_dpp" in op) or ("row_" in mods) or ("quad_perm" in mods) or ("wave_" in mods)
    i.perm = op.startswith("v_permlane")
    i.rdlane = op.startswith("v_readlane") or op.startswith("v_readfirstlane") or op.startswith("v_writelane")
    i.trans = any(op.startswith(x) for x in TRANS)
    i.sdwa = ("_sdwa" in op) or ("op_sel" in mods and not op.startswith("v_pk") and not op.startswith("v_mfma") and not op.startswith("v_dot"))
    i.wide_store = False
    i.store_data = set()
    i.ldsdma = False
    i.slots = 1
    i.lanesel = set()
    i.vmem_sregs = set()
    R = [_regs(o) for o in ops]
    if op == "s_nop":
        i.kind = "nop"
        i.slots = int(ops[0], 0) + 1
    elif op.startswith("v_mfma") or op.startswith("v_smfmac"):
        i.kind = "mfma"
        i.w = set(R[0])
        i.rA = set(R[1]) | set(R[2])
        i.rC = set(R[3])
        i.r = i.rA | i.rC
        if "16x16x32" in op or "16x16x16" in op:
            i.passes = 4
        elif "32x32x16" in op or "32x32x8" in op:
            i.passes = 8
        elif "4x4x4" in op:
            i.passes = 2
        else:
            i.passes = 16
    elif op.startswith("v_"):
        i.kind = "valu"
        if op.startswith("v_cmp"):
            i.w = set(R[0])
            for x in R[1:]:
                i.r |= set(x)
            if op.startswith("v_cmpx"):
                i.w |= {"exec_lo", "exec_hi"}
        elif op.startswith("v_permlane") and "swap" in op:
            i.w = set(R[0]) | set(R[1])
            i.r = set(i.w)
        elif re.match(r"v_(add|sub|subrev)_co_u32|v_div_scale|v_mad_u64_u32", op):
            i.w = set(R[0]) | set(R[1])
            for x in R[2:]:
                i.r |= set(x)
        elif re.match(r"v_(addc|subb|subbrev)_co_u32", op):
            i.w = set(R[0]) | set(R[1])
            for x in R[2:]:
                i.r |= set(x)
        elif op == "v_nop":
            pass
        else:
            i.w = set(R[0])
            for x in R[1:]:
                i.r |= set(x)
            if re.match(r"v_fmac|v_dot\w*c_|v_pk_fmac|v_writelane", op) or i.dpp or i.sdwa:
                i.r |= set(R[0])
            if op.startswith("v_cndmask") and len(ops) == 3:
                i.r |= {"vcc_lo", "vcc_hi"}
            if op.startswith("v_div_fmas"):
                i.r |= {"vcc_lo", "vcc_hi"}
            if op.startswith("v_readlane") or op.startswith("v_writelane"):
                i.lanesel = set(R[2])
    elif op.startswith("buffer_") or op.startswith("global_") or op.startswith("flat_"):
        i.kind = "vmem"
        allr = set()
        for x in R:
            allr |= set(x)
        is_lds = (" lds" in " " + mods) or ("load_lds" in op)
        if op in ("buffer_wbl2", "buffer_inv"):
            pass
        elif "load" in op and not is_lds:
            i.w = set(R[0])
            for x in R[1:]:
                i.r |= set(x)
        elif is_lds:
            i.ldsdma = True
            i.r = allr | {"m0"}
        elif "store" in op:
            i.r = allr
            data = R[0] if op.startswith("buffer_") else R[1]
            i.store_data = set(data)
            i.wide_store = len(data) >= 3
        elif "atomic" in op:
            ret = " sc0" in " " + mods
            if op.startswith("buffer_"):
                i.r = allr
                if ret:
                    i.w = set(R[0])
            else:
                if ret:
                    i.w = set(R[0])
                    for x in R[1:]:
                        i.r |= set(x)
                else:
                    i.r = allr
        i.vmem_sregs = {x for x in i.r if x[0] == "s" or x.startswith("vcc")}
    elif op.startswith("ds_"):
        i.kind = "ds"
        if re.match(r"ds_(read|bpermute|permute|swizzle)", op) or "_rtn" in op:
            i.w = set(R[0])
            for x in R[1:]:
                i.r |= set(x)
        else:
            for x in R:
                i.r |= set(x)
    elif op.startswith("s_load") or op.startswith("s_buffer_load") or op.startswith("s_mem") or op.startswith("s_atomic"):
        i.kind = "smem"
        i.w = set(R[0])
        for x in R[1:]:
            i.r |= set(x)
    elif op.startswith("s_"):
        i.kind = "salu"
        if re.match(r"s_(cmp|waitcnt|barrier|branch|cbranch|endpgm|sleep|setprio|bitcmp|sethalt|setreg)", op):
            for x in R:
                i.r |= set(x)
        else:
            if R:
                i.w = set(R[0])
            for x in R[1:]:
                i.r |= set(x)
            if "saveexec" in op:
                i.w |= {"exec_lo", "exec_hi"}
    else:
        i.kind = "other"
    return i


def need(p, c):
    n = 0
    pv = {x for x in p.w if x[0] in "va" and not x.startswith("vcc")}
    ps = {x for x in p.w if x[0] == "s" or x.startswith("vcc")}
    if p.kind == "valu":
        if c.kind == "mfma" and pv & c.r:
            n = max(n, 2)
        if c.kind == "valu":
            if c.dpp and pv & c.r:
                n = max(n, 2)
            if c.perm and pv & c.r:
                n = max(n, 2)
            if c.rdlane and pv & c.r:
                n = max(n, 1)
            if p.trans and (pv & c.r):
                n = max(n, 1)
            if p.sdwa and (pv & (c.r | c.w)):
                n = max(n, 1)
            if ps & c.r:
                n = max(n, 2)
            if ps & c.lanesel:
                n = max(n, 4)
            if c.op.startswith("v_div_fmas") and ps & {"vcc_lo", "vcc_hi"}:
                n = max(n, 4)
        if p.trans and c.kind in ("vmem", "ds") and pv & c.r:
            n = max(n, 1)
        if c.kind == "vmem" and ps & c.r:
            n = max(n, 5)
        if c.kind in ("salu", "smem") and ps & c.r:
            n = max(n, 1 if c.kind == "salu" else 4)
        if {"exec_lo", "exec_hi"} & p.w:
            if c.kind == "mfma" or c.rdlane or c.perm:
                n = max(n, 4)
            if c.dpp:
                n = max(n, 5)
            if c.kind == "valu":
                n = max(n, 2)
    if p.kind == "mfma":
        P = p.passes
        big = {2: 5, 4: 8, 8: 12, 16: 20}[P]
        if c.kind == "mfma":
            if pv & c.rA:
                n = max(n, big)
            if pv & c.rC:
                if c.rC == p.w and c.passes == P:
                    n = max(n, 2 if P == 2 else 0)
                else:
                    n = max(n, P + 2)
            if (pv & c.w) and not (pv & c.rC):
                n = max(n, big)
        elif c.kind in ("valu", "vmem", "ds"):
            if pv & (c.r | c.w):
                n = max(n, big)
        if c.kind == "valu" and (p.rC & c.w):
            n = max(n, {2: 1, 4: 3, 8: 7, 16: 15}[P])
    if p.kind == "salu" and "m0" in p.w and c.kind == "vmem" and c.ldsdma:
        n = max(n, 1)
    if p.kind == "salu" and "m0" in p.w and c.kind == "ds" and "addtid" in c.op:
        n = max(n, 1)
    if p.kind == "vmem" and p.wide_store and (p.store_data & c.w):
        n = max(n, 2 if c.kind == "valu" else 1)
    return n


class Asm:
    def __init__(self):
        self.lines = []
        self.hist = []
        self.maxv = -1
        self.maxa = -1
        self.maxs = -1
        self._uid = 0

    def uid(self, base):
        self._uid += 1
        return f"{base}_{self._uid}"

    def raw(self, text):
        self.lines.append(text)

    def comment(self, text):
        self.lines.append("    ; " + text)

    def _track(self, i):
        for x in i.w | i.r:
            m = re.fullmatch(r"([vas])(\d+)", x)
            if m:
                n = int(m.group(2))
                if m.group(1) == "v":
                    self.maxv = max(self.maxv, n)
                elif m.group(1) == "a":
                    self.maxa = max(self.maxa, n)
                else:
                    self.maxs = max(self.maxs, n)

    def _pad(self, n):
        while n > 0:
            k = min(n, 16)
            self.lines.append(f"    s_nop {k-1}")
            self.hist.append(parse(f"s_nop {k-1}"))
            n -= k

    def flush(self):
        dist = 0
        req = 0
        for p in reversed(self.hist):
            worst = 0
            if p.kind == "valu":
                worst = 2
                if any(x[0] == "s" or x.startswith("vcc") or x.startswith("exec") for x in p.w):
                    worst = 5
            elif p.kind == "mfma":
                worst = {2: 5, 4: 8, 8: 12, 16: 20}[p.passes]
            elif p.kind == "salu" and "m0" in p.w:
                worst = 1
            elif p.kind == "vmem" and p.wide_store:
                worst = 2
            req = max(req, worst - dist)
            dist += p.slots
            if dist > 24:
                break
        self._pad(req)
        self.hist = []

    def label(self, name):
        self.flush()
        self.lines.append(f"{name}:")

    def __call__(self, text):
        for line in text.strip().split("\n"):
            line = line.strip()
            if not line or line.startswith(";"):
                if line:
                    self.lines.append("    " + line)
                continue
            if line.endswith(":"):
                self.label(line[:-1])
                continue
            i = parse(line)
            if i.kind == "salu" and re.match(r"s_(branch|cbranch|endpgm|setpc|swappc)", i.op):
                self.flush()
                self.lines.append("    " + line)
                continue
            dist = 0
            req = 0
            for p in reversed(self.hist):
                req = max(req, need(p, i) - dist)
                dist += p.slots
                if dist > 24:
                    break
            if req > 0:
                self._pad(req)
            self.lines.append("    " + line)
            self._track(i)
            self.hist.append(i)
            if len(self.hist) > 40:
                self.hist = self.hist[-40:]

    def text(self):
        return "\n".join(self.lines) + "\n"


def kernel_begin(a, name):
    a.raw(".text")
    a.raw(f".globl {name}")
    a.raw(".p2align 8")
    a.raw(f".type {name},@function")
    a.raw(f"{name}:")
    a.hist = []
    a.maxv = a.maxa = a.maxs = -1


def kernel_desc(name, nvgpr, nsgpr, accum_offset):
    return f""".p2align 6
.amdhsa_kernel {name}
  .amdhsa_next_free_vgpr {nvgpr}
  .amdhsa_next_free_sgpr {nsgpr}
  .amdhsa_accum_offset {accum_offset}
  .amdhsa_group_segment_fixed_size 0
  .amdhsa_kernarg_size 96
  .amdhsa_user_sgpr_count 2
  .amdhsa_user_sgpr_kernarg_segment_ptr 1
  .amdhsa_system_sgpr_workgroup_id_x 1
.end_amdhsa_kernel
"""
```

```python
import sys
from asmlib import Asm, kernel_begin, kernel_desc

NAME = "sequential_preLN__gqa_block_cached__glu_gated_glu__decode"
Q_OFF = 0x0
ML_OFF = 0x4000
PO_OFF = 0x10000
ATT_OFF = 0x100000
HID_OFF = 0x120000
H_OFF = 0x122000
SCALE = 0x3DB504F3
LOG2E = 0x3FB8AA3B
EPS = 0x3727C5AC

sX, sK, sV, sWQ, sWO, sBX, sWG, sWU, sWD, sOUT, sDBG, sWS = 16, 18, 20, 22, 24, 26, 28, 30, 32, 34, 36, 38


def load_args(a):
    a("s_load_dwordx16 s[16:31], s[0:1], 0")
    a("s_load_dwordx8 s[32:39], s[0:1], 64")


def srd(a, d, p, nbytes, off=None):
    if off is None:
        a(f"s_mov_b32 s{d}, s{p}")
        a(f"s_and_b32 s{d+1}, s{p+1}, 0xffff")
    else:
        a(f"s_add_u32 s{d}, s{p}, {off}")
        a(f"s_addc_u32 s{d+1}, s{p+1}, 0")
        a(f"s_and_b32 s{d+1}, s{d+1}, 0xffff")
    a(f"s_mov_b32 s{d+2}, {nbytes}")
    a(f"s_mov_b32 s{d+3}, 0x20000")


def red_rows(a, v, tmp, op):
    a(f"v_mov_b32 {tmp}, {v}")
    a(f"v_permlane16_swap_b32 {tmp}, {v}")
    a(f"{op} {v}, {tmp}, {v}")
    a(f"v_mov_b32 {tmp}, {v}")
    a(f"v_permlane32_swap_b32 {tmp}, {v}")
    a(f"{op} {v}, {tmp}, {v}")


def red64(a, v, tmp, op):
    for r in (8, 4, 2, 1):
        a(f"{op}_dpp {v}, {v}, {v} row_ror:{r} row_mask:0xf bank_mask:0xf")
    red_rows(a, v, tmp, op)


def bf16r(a, dst, src):
    a(f"v_cvt_pk_bf16_f32 {dst}, {src}, {src}")
    a(f"v_lshlrev_b32 {dst}, 16, {dst}")


def unpack(a, lo, hi, src):
    a(f"v_lshlrev_b32 {lo}, 16, {src}")
    a(f"v_and_b32 {hi}, 0xffff0000, {src}")


def ln_stats(a, xs, t0, t1, t2, vmean, vden):
    a(f"v_add_f32 {t0}, {xs[0]}, {xs[1]}")
    for j in range(2, 8):
        a(f"v_add_f32 {t0}, {t0}, {xs[j]}")
    red64(a, t0, t1, "v_add_f32")
    a(f"v_mul_f32 {t0}, 0x3b000000, {t0}")
    a(f"v_sub_f32 {t1}, {xs[0]}, {t0}")
    a(f"v_mul_f32 {t2}, {t1}, {t1}")
    for j in range(1, 8):
        a(f"v_sub_f32 {t1}, {xs[j]}, {t0}")
        a(f"v_fmac_f32 {t2}, {t1}, {t1}")
    red64(a, t2, t1, "v_add_f32")
    a(f"v_mul_f32 {t2}, 0x3b000000, {t2}")
    bf16r(a, vmean, t0)
    bf16r(a, t2, t2)
    a(f"v_add_f32 {t2}, {EPS:#x}, {t2}")
    bf16r(a, t2, t2)
    a(f"v_sqrt_f32 {t2}, {t2}")
    bf16r(a, t2, t2)
    a(f"v_rcp_f32 {vden}, {t2}")


def ln_apply(a, x, vmean, vrcp, vden, t0, t1):
    a(f"v_sub_f32 {x}, {x}, {vmean}")
    bf16r(a, x, x)
    a(f"v_mul_f32 {t0}, {x}, {vrcp}")
    a(f"v_fma_f32 {t1}, -{t0}, {vden}, {x}")
    a(f"v_fma_f32 {x}, {t1}, {vrcp}, {t0}")


def k_qproj(a):
    name = "k1_qproj_kernel"
    kernel_begin(a, name)
    a("s_cmp_ge_u32 s2, 64")
    a("s_cbranch_scc1 L1_done")
    load_args(a)
    a("v_and_b32 v1, 63, v0")
    a("v_lshlrev_b32 v2, 4, v1")
    a("v_lshrrev_b32 v3, 3, v0")
    a("v_lshlrev_b32 v4, 4, v3")
    a("v_lshlrev_b32 v5, 16, v3")
    a("v_and_b32 v6, 7, v0")
    a("v_lshlrev_b32 v6, 4, v6")
    a("v_add_u32 v5, v5, v6")
    a("s_lshl_b32 s3, s2, 7")
    a("s_waitcnt lgkmcnt(0)")
    srd(a, 40, sX, 1024)
    srd(a, 44, sWQ, 512 * 8192)
    srd(a, 48, sWS, 8192, Q_OFF)
    a("buffer_load_dwordx4 v[8:11], v2, s[40:43], 0 offen")
    a("buffer_load_dwordx4 v[12:15], v4, s[40:43], 0 offen")
    for i in range(8):
        a(f"s_add_u32 s4, s3, {i*8192}")
        a(f"buffer_load_dwordx4 v[{32+4*i}:{35+4*i}], v5, s[44:47], s4 offen")
    a("s_waitcnt vmcnt(8)")
    xs = [f"v{16+j}" for j in range(8)]
    xo = [f"v{24+j}" for j in range(8)]
    for j in range(4):
        unpack(a, xs[2*j], xs[2*j+1], f"v{8+j}")
        unpack(a, xo[2*j], xo[2*j+1], f"v{12+j}")
    ln_stats(a, xs, "v64", "v65", "v66", "v67", "v68")
    for j in range(8):
        ln_apply(a, xo[j], "v67", "v68", "v66", "v64", "v65")
        bf16r(a, xo[j], xo[j])
    acc = [f"v{72+j}" for j in range(8)]
    for j in range(8):
        a(f"v_mov_b32 {acc[j]}, 0")
    for i in range(8):
        a(f"s_waitcnt vmcnt({7-i})")
        for j in range(4):
            unpack(a, "v64", "v65", f"v{32+4*i+j}")
            a(f"v_fmac_f32 {acc[2*j]}, {xo[i]}, v64")
            a(f"v_fmac_f32 {acc[2*j+1]}, {xo[i]}, v65")
    for j in range(8):
        a(f"v_add_f32_dpp {acc[j]}, {acc[j]}, {acc[j]} row_ror:8 row_mask:0xf bank_mask:0xf")
    for j in range(8):
        red_rows(a, acc[j], "v64", "v_add_f32")
    a("v_lshrrev_b32 v64, 6, v0")
    a("v_lshlrev_b32 v64, 8, v64")
    a("v_and_b32 v65, 7, v0")
    a("v_lshlrev_b32 v65, 5, v65")
    a("v_add_u32 v64, v64, v65")
    a("ds_write_b128 v64, v[72:75]")
    a("ds_write_b128 v64, v[76:79] offset:16")
    a("s_waitcnt lgkmcnt(0)")
    a("s_barrier")
    a("v_cmp_gt_u32 vcc, 64, v0")
    a("s_and_saveexec_b64 s[6:7], vcc")
    a("s_cbranch_execz L1_done")
    a("v_lshlrev_b32 v64, 2, v0")
    for w in range(8):
        a(f"ds_read_b32 v{72+w}, v64 offset:{w*256}")
    a("s_waitcnt lgkmcnt(0)")
    for w in range(1, 8):
        a(f"v_add_f32 v72, v72, v{72+w}")
    a("v_cvt_pk_bf16_f32 v72, v72, v72")
    a("v_lshlrev_b32 v64, 1, v0")
    a("buffer_store_short v72, v64, s[48:51], s3 offen")
    a("L1_done:")
    a("s_endpgm")
    return name, a.maxv + 1, a.maxs + 1


def k_attn(a, mode, nt):
    name = "k2_attn_kernel"
    ntf = " nt" if nt else ""
    kernel_begin(a, name)
    a("s_cmp_ge_u32 s2, 256")
    a("s_cbranch_scc1 L2_done")
    load_args(a)
    a("v_lshrrev_b32 v1, 6, v0")
    a("v_readfirstlane_b32 s3, v1")
    a("v_and_b32 v1, 63, v0")
    a("v_lshlrev_b32 v2, 4, v1")
    a("v_and_b32 v3, 3, v1")
    a("v_lshlrev_b32 v3, 10, v3")
    a("v_bfe_u32 v4, v1, 2, 2")
    a("v_lshlrev_b32 v4, 8, v4")
    a("v_add_u32 v3, v3, v4")
    a("v_lshrrev_b32 v4, 4, v1")
    a("v_lshlrev_b32 v4, 4, v4")
    a("v_add_u32 v3, v3, v4")
    a("v_add_u32 v5, 0x1000, v3")
    a("v_and_b32 v6, 3, v1")
    a("v_lshlrev_b32 v6, 8, v6")
    a("v_add_u32 v6, v6, v4")
    a("s_lshr_b32 s4, s2, 5")
    a("s_and_b32 s5, s2, 31")
    a("s_lshl_b32 s6, s5, 3")
    a("s_add_u32 s6, s6, s3")
    a("s_lshl_b32 s7, s4, 24")
    if mode == 0:
        a("s_lshl_b32 s8, s6, 16")
        stride = 8192
    else:
        a("s_lshl_b32 s8, s6, 13")
        stride = 256 * 8192
    a("s_lshl_b32 s9, s4, 10")
    a("s_waitcnt lgkmcnt(0)")
    srd(a, 40, sK, 1 << 24, "s7")
    srd(a, 44, sV, 1 << 24, "s7")
    srd(a, 48, sWS, 8192, Q_OFF)
    srd(a, 52, sWS, 0x100000)
    Q = 8
    O = 24
    P = 56
    S = 88
    T = 96
    MX, LS, TA, TB, TC, TD = "v112", "v113", "v114", "v115", "v116", "v117"
    RING = 120
    NU = 4

    for i in range(4):
        a(f"buffer_load_dwordx4 v[{Q+4*i}:{Q+4*i+3}], v6, s[48:51], s9 offen offset:{64*i}")

    def issue(u):
        if u >= 16:
            return
        r0 = RING + 32 * (u % NU)
        t = u % 8
        a(f"s_add_u32 s10, s8, {t*stride}")
        if u < 8:
            for h in range(2):
                for i in range(4):
                    r = r0 + 16 * h + 4 * i
                    a(f"buffer_load_dwordx4 v[{r}:{r+3}], {'v3' if h == 0 else 'v5'}, s[40:43], s10 offen offset:{64*i}{ntf}")
        else:
            for i in range(8):
                if i == 4:
                    a("s_add_u32 s10, s10, 4096")
                r = r0 + 4 * i
                a(f"buffer_load_dwordx4 v[{r}:{r+3}], v2, s[44:47], s10 offen offset:{1024*(i%4)}{ntf}")

    for u in range(NU):
        issue(u)
    for j in range(32):
        a(f"v_mov_b32 v{O+j}, 0")
    a(f"v_mov_b32 {MX}, 0xff800000")
    a(f"v_mov_b32 {LS}, 0")
    a(f"s_mov_b32 s11, {SCALE:#x}")
    a(f"s_mov_b32 s12, {LOG2E:#x}")

    def outstanding_after(u):
        n = min(16, u + NU) - (u + 1)
        return 8 * n

    for t in range(8):
        r0 = RING + 32 * (t % NU)
        a(f"s_waitcnt vmcnt({outstanding_after(t)})")
        for h in range(2):
            for i in range(4):
                r = r0 + 16 * h + 4 * i
                c = "0" if i == 0 else f"v[{S+4*h}:{S+4*h+3}]"
                a(f"v_mfma_f32_16x16x32_bf16 v[{S+4*h}:{S+4*h+3}], v[{r}:{r+3}], v[{Q+4*i}:{Q+4*i+3}], {c}")
        issue(t + NU)
        for j in range(4):
            a(f"v_cvt_pk_bf16_f32 {TA}, v{S+2*j}, v{S+2*j+1}")
            unpack(a, TB, TC, TA)
            a(f"v_mul_f32 {TB}, s11, {TB}")
            a(f"v_mul_f32 {TC}, s11, {TC}")
            a(f"v_cvt_pk_bf16_f32 v{P+4*t+j}, {TB}, {TC}")
            a(f"v_max3_f32 {MX}, {TB}, {TC}, {MX}")
    red_rows(a, MX, TA, "v_max_f32")
    bf16r(a, MX, MX)
    a(f"v_mul_f32 {TD}, s12, {MX}")
    for t in range(8):
        u = 8 + t
        r0 = RING + 32 * (u % NU)
        for j in range(4):
            pr = f"v{P+4*t+j}"
            unpack(a, TA, TB, pr)
            a(f"v_fma_f32 {TA}, {TA}, s12, -{TD}")
            a(f"v_fma_f32 {TB}, {TB}, s12, -{TD}")
            a(f"v_exp_f32 {TA}, {TA}")
            a(f"v_exp_f32 {TB}, {TB}")
            a(f"v_add_f32 {LS}, {LS}, {TA}")
            a(f"v_cvt_pk_bf16_f32 {pr}, {TA}, {TB}")
            a(f"v_add_f32 {LS}, {LS}, {TB}")
        a(f"s_waitcnt vmcnt({outstanding_after(u)})")
        if t == 0:
            a("s_mov_b32 s13, 0x05040100")
            a("s_mov_b32 s14, 0x07060302")
        for j in range(4):
            tb = T + 8 * (j % 2)
            for p in range(4):
                lo_src = r0 + 4 * (2 * p) + j
                hi_src = r0 + 4 * (2 * p + 1) + j
                a(f"v_perm_b32 v{tb+p}, v{hi_src}, v{lo_src}, s13")
                a(f"v_perm_b32 v{tb+4+p}, v{hi_src}, v{lo_src}, s14")
            for e2 in range(2):
                e = 2 * j + e2
                a(f"v_mfma_f32_16x16x32_bf16 v[{O+4*e}:{O+4*e+3}], v[{tb+4*e2}:{tb+4*e2+3}], v[{P+4*t}:{P+4*t+3}], v[{O+4*e}:{O+4*e+3}]")
        issue(u + NU)
    red_rows(a, LS, TA, "v_add_f32")
    a("v_and_b32 v3, 3, v1")
    a("v_lshlrev_b32 v3, 9, v3")
    a("v_lshrrev_b32 v4, 4, v1")
    a("v_lshlrev_b32 v4, 7, v4")
    a("v_add_u32 v3, v3, v4")
    a("s_lshl_b32 s10, s3, 11")
    a("v_add_u32 v3, s10, v3")
    for r in range(4):
        for e in range(8):
            a(f"v_mov_b32 v{RING+8*r+e}, v{O+4*e+r}")
    for r in range(4):
        a(f"ds_write_b128 v3, v[{RING+8*r}:{RING+8*r+3}] offset:{32*r}")
        a(f"ds_write_b128 v3, v[{RING+8*r+4}:{RING+8*r+7}] offset:{32*r+16}")
    a("v_and_b32 v4, 3, v1")
    a("v_lshlrev_b32 v4, 3, v4")
    a("s_lshl_b32 s10, s3, 5")
    a("v_add_u32 v4, s10, v4")
    a(f"ds_write_b64 v4, v[112:113] offset:16384")
    a("s_waitcnt lgkmcnt(0)")
    a("s_barrier")
    a("v_lshrrev_b32 v3, 7, v0")
    a("v_lshlrev_b32 v4, 3, v3")
    a("v_lshlrev_b32 v5, 2, v0")
    for w in range(8):
        a(f"ds_read_b64 v[{8+2*w}:{9+2*w}], v4 offset:{16384+32*w}")
    for w in range(7):
        a(f"ds_read_b32 v{24+w}, v5 offset:{2048*w}")
    a("s_waitcnt lgkmcnt(7)")
    a(f"ds_read_b32 v31, v5 offset:{2048*7}")
    a("v_max3_f32 v32, v8, v10, v12")
    a("v_max3_f32 v32, v32, v14, v16")
    a("v_max3_f32 v32, v32, v18, v20")
    a("v_max_f32 v32, v32, v22")
    for w in range(8):
        a(f"v_sub_f32 v{8+2*w}, v{8+2*w}, v32")
        a(f"v_mul_f32 v{8+2*w}, s12, v{8+2*w}")
        a(f"v_exp_f32 v{8+2*w}, v{8+2*w}")
    a("v_mul_f32 v33, v8, v9")
    for w in range(1, 8):
        a(f"v_fmac_f32 v33, v{8+2*w}, v{9+2*w}")
    a("s_waitcnt lgkmcnt(0)")
    a("v_mul_f32 v34, v8, v24")
    for w in range(1, 8):
        a(f"v_fmac_f32 v34, v{8+2*w}, v{24+w}")
    a("s_lshl_b32 s10, s4, 7")
    a("s_add_u32 s10, s10, s5")
    a("v_lshlrev_b32 v6, 5, v3")
    a("v_add_u32 v6, s10, v6")
    a("v_lshlrev_b32 v7, 9, v6")
    a("v_and_b32 v5, 127, v0")
    a("v_lshlrev_b32 v5, 2, v5")
    a("v_add_u32 v7, v7, v5")
    a(f"s_mov_b32 s10, {PO_OFF}")
    a("buffer_store_dword v34, v7, s[52:55], s10 offen")
    a("v_lshlrev_b32 v6, 3, v6")
    a(f"s_mov_b32 s10, {ML_OFF}")
    a("v_cmp_eq_u32 vcc, 0, v5")
    a("s_and_saveexec_b64 s[6:7], vcc")
    a("s_cbranch_execz L2_done")
    a("buffer_store_dwordx2 v[32:33], v6, s[52:55], s10 offen")
    a("L2_done:")
    a("s_endpgm")
    return name, a.maxv + 1, a.maxs + 1


def k_oproj(a):
    name = "k3_oproj_kernel"
    kernel_begin(a, name)
    a("s_cmp_ge_u32 s2, 32")
    a("s_cbranch_scc1 L3_done")
    load_args(a)
    a("v_lshrrev_b32 v1, 6, v0")
    a("v_readfirstlane_b32 s3, v1")
    a("v_and_b32 v1, 63, v0")
    a("v_lshlrev_b32 v2, 4, v1")
    a("s_lshl_b32 s4, s2, 17")
    a("s_waitcnt lgkmcnt(0)")
    srd(a, 40, sWO, 1 << 17, "s4")
    srd(a, 52, sWS, 0x200000)
    a("s_lshl_b32 s5, s3, 14")
    for j in range(16):
        f = (j & 3) | (((j >> 3) & 1) << 2)
        a(f"v_xor_b32 v3, {f << 5}, v2")
        a(f"s_add_u32 s6, s5, {j*1024}")
        a("s_mov_b32 m0, s6")
        a("buffer_load_dwordx4 v3, s[40:43], s6 offen lds")
    a("v_lshrrev_b32 v4, 5, v1")
    a("v_lshlrev_b32 v4, 9, v4")
    a("v_and_b32 v5, 31, v1")
    a("v_lshlrev_b32 v6, 4, v5")
    a("v_add_u32 v4, v4, v6")
    a("s_lshl_b32 s6, s2, 14")
    a("s_lshl_b32 s7, s3, 11")
    a("s_add_u32 s6, s6, s7")
    a(f"s_add_u32 s6, s6, {PO_OFF}")
    a("buffer_load_dwordx4 v[8:11], v4, s[52:55], s6 offen")
    a("buffer_load_dwordx4 v[12:15], v4, s[52:55], s6 offen offset:1024")
    a("v_lshlrev_b32 v6, 3, v5")
    a("s_lshl_b32 s7, s2, 8")
    a(f"s_add_u32 s7, s7, {ML_OFF}")
    a("buffer_load_dwordx2 v[16:17], v6, s[52:55], s7 offen")
    a(f"s_mov_b32 s12, {LOG2E:#x}")
    a("s_waitcnt vmcnt(0)")
    a("v_mov_b32 v18, v16")
    red64(a, "v18", "v19", "v_max_f32")
    a("v_sub_f32 v16, v16, v18")
    a("v_mul_f32 v16, s12, v16")
    a("v_exp_f32 v16, v16")
    a("v_mul_f32 v17, v16, v17")
    red64(a, "v17", "v19", "v_add_f32")
    a("v_mul_f32 v17, 0.5, v17")
    a("v_rcp_f32 v19, v17")
    a("v_mul_f32 v20, v16, v19")
    a("v_fma_f32 v21, -v20, v17, v16")
    a("v_fma_f32 v16, v21, v19, v20")
    a("v_lshrrev_b32 v19, 5, v1")
    a("s_lshl_b32 s7, s3, 2")
    a("v_add_u32 v19, s7, v19")
    a("v_lshlrev_b32 v19, 2, v19")
    a("ds_bpermute_b32 v20, v19, v16")
    a("ds_bpermute_b32 v21, v19, v16 offset:8")
    a("s_waitcnt lgkmcnt(0)")
    for j in range(4):
        a(f"v_mul_f32 v{8+j}, v20, v{8+j}")
        a(f"v_fmac_f32 v{8+j}, v21, v{12+j}")
    for j in range(4):
        a(f"v_mov_b32 v22, v{8+j}")
        a(f"v_permlane32_swap_b32 v22, v{8+j}")
        a(f"v_add_f32 v{8+j}, v22, v{8+j}")
    SC = 131072
    a("s_lshl_b32 s7, s3, 9")
    a("v_lshlrev_b32 v6, 4, v5")
    a("v_add_u32 v6, s7, v6")
    a(f"v_add_u32 v6, {SC}, v6")
    a("ds_write_b128 v6, v[8:11]")
    a("s_waitcnt lgkmcnt(0)")
    a("s_barrier")
    a("v_lshrrev_b32 v3, 4, v1")
    a("v_bfe_u32 v4, v1, 2, 2")
    a("v_and_b32 v7, 3, v1")
    a("v_lshlrev_b32 v22, 13, v3")
    a("v_lshlrev_b32 v23, 10, v4")
    a("v_add_u32 v22, v22, v23")
    a("v_lshlrev_b32 v23, 3, v7")
    a("v_add_u32 v22, v22, v23")
    a("s_lshl_b32 s7, s3, 7")
    a("v_add_u32 v22, s7, v22")
    a("v_and_b32 v23, 1, v3")
    a("v_lshlrev_b32 v23, 2, v23")
    a("v_or_b32 v23, v23, v4")
    a("v_lshlrev_b32 v23, 5, v23")
    for nb in range(4):
        a(f"v_add_u32 v{24+nb}, {32*nb}, v22")
        a(f"v_xor_b32 v{24+nb}, v{24+nb}, v23")
    W = 64
    for nb in range(4):
        for ks in range(4):
            r = W + 16 * nb + 4 * ks
            for half in range(2):
                off = ks * 32768 + half * 4096
                if off < 65536:
                    a(f"ds_read_b64_tr_b16 v[{r+2*half}:{r+2*half+1}], v{24+nb} offset:{off}")
                else:
                    if half == 0 and ks == 2:
                        a(f"v_add_u32 v{28+nb}, 0x10000, v{24+nb}")
                    a(f"ds_read_b64_tr_b16 v[{r+2*half}:{r+2*half+1}], v{28+nb} offset:{off-65536}")
        a("s_waitcnt lgkmcnt(0)")
    a("v_cmp_gt_u32 vcc, 128, v0")
    a("s_and_saveexec_b64 s[8:9], vcc")
    a("s_cbranch_execz L3_skip")
    a("v_lshlrev_b32 v6, 2, v0")
    a(f"v_add_u32 v6, {SC}, v6")
    for w in range(8):
        a(f"ds_read_b32 v{8+w}, v6 offset:{512*w}")
    a("s_waitcnt lgkmcnt(0)")
    for w in range(1, 8):
        a(f"v_add_f32 v8, v8, v{8+w}")
    a("v_cvt_pk_bf16_f32 v8, v8, v8")
    a("v_lshlrev_b32 v6, 1, v0")
    a(f"v_add_u32 v6, {SC+4096}, v6")
    a("ds_write_b16 v6, v8")
    a("s_waitcnt lgkmcnt(0)")
    a("L3_skip:")
    a("s_mov_b64 exec, s[8:9]")
    a("s_barrier")
    a("v_lshlrev_b32 v6, 4, v3")
    a(f"v_add_u32 v6, {SC+4096}, v6")
    for ks in range(4):
        a(f"ds_read_b128 v[{32+4*ks}:{35+4*ks}], v6 offset:{64*ks}")
    a("s_waitcnt lgkmcnt(0)")
    for nb in range(4):
        for ks in range(4):
            r = W + 16 * nb + 4 * ks
            c = "0" if ks == 0 else f"v[{48+4*nb}:{51+4*nb}]"
            a(f"v_mfma_f32_16x16x32_bf16 v[{48+4*nb}:{51+4*nb}], v[{r}:{r+3}], v[{32+4*ks}:{35+4*ks}], {c}")
    a("v_lshlrev_b32 v6, 4, v3")
    a("s_lshl_b32 s7, s3, 8")
    a("s_lshl_b32 s6, s2, 11")
    a("s_add_u32 s6, s6, s7")
    a(f"s_add_u32 s6, s6, {ATT_OFF}")
    a("v_and_b32 v7, 15, v1")
    a("v_cmp_eq_u32 vcc, 0, v7")
    a("s_and_saveexec_b64 s[8:9], vcc")
    for nb in range(4):
        a(f"buffer_store_dwordx4 v[{48+4*nb}:{51+4*nb}], v6, s[52:55], s6 offen offset:{64*nb}")
    a("L3_done:")
    a("s_endpgm")
    return name, a.maxv + 1, a.maxs + 1


def k_gateup(a):
    name = "k4_gateup_kernel"
    kernel_begin(a, name)
    a("s_cmp_ge_u32 s2, 28")
    a("s_cbranch_scc1 L4_done")
    load_args(a)
    a("v_lshrrev_b32 v1, 6, v0")
    a("v_readfirstlane_b32 s3, v1")
    a("v_and_b32 v1, 63, v0")
    a("s_waitcnt lgkmcnt(0)")
    srd(a, 40, sWG, 512 * 3584)
    srd(a, 44, sWU, 512 * 3584)
    srd(a, 48, sX, 1024)
    srd(a, 52, sWS, 0x200000)
    a("v_lshrrev_b32 v2, 3, v1")
    a("s_movk_i32 s4, 3584")
    a("v_mul_lo_u32 v2, v2, s4")
    a("v_and_b32 v3, 7, v1")
    a("v_bfe_u32 v4, v1, 4, 1")
    a("v_xor_b32 v3, v3, v4")
    for var in range(4):
        fx = ((var & 1) << 1) | ((var >> 1) << 2)
        a(f"v_xor_b32 v4, {fx}, v3")
        a(f"v_lshlrev_b32 v4, 4, v4")
        a(f"v_add_u32 v{8+var}, v2, v4")
    a("s_lshl_b32 s5, s2, 7")
    a(f"s_mul_i32 s6, s3, {8*8*3584}")
    a("s_add_u32 s5, s5, s6")
    a("s_lshl_b32 s7, s3, 13")
    for reg in range(2):
        for jj in range(8):
            a(f"s_add_u32 s8, s5, {jj*8*3584}")
            a(f"s_add_u32 m0, s7, {reg*65536 + jj*1024}")
            a(f"buffer_load_dwordx4 v{8 + (jj & 1) + 2*reg}, s[{40+4*reg}:{43+4*reg}], s8 offen lds")
    a("v_lshlrev_b32 v2, 2, v0")
    for p in range(32):
        if p % 2 == 0:
            a(f"s_mov_b32 s8, {ATT_OFF + p*2048}")
        a(f"buffer_load_dword v{16+p}, v2, s[52:55], s8 offen offset:{2048*(p%2)}")
    a("v_lshlrev_b32 v3, 1, v0")
    a("buffer_load_ushort v48, v3, s[48:51], 0 offen")
    a("s_waitcnt vmcnt(0)")
    for p in range(1, 32):
        a(f"v_add_f32 v16, v16, v{16+p}")
    bf16r(a, "v16", "v16")
    a("v_lshlrev_b32 v48, 16, v48")
    a("v_add_f32 v16, v16, v48")
    bf16r(a, "v16", "v16")
    SC = 131072
    a(f"v_add_u32 v3, {SC}, v2")
    a("ds_write_b32 v3, v16")
    a("s_cmp_lg_u32 s2, 0")
    a("s_cbranch_scc1 L4_noh")
    a(f"s_mov_b32 s8, {H_OFF}")
    a("buffer_store_dword v16, v2, s[52:55], s8 offen")
    a("L4_noh:")
    a("s_waitcnt lgkmcnt(0)")
    a("s_barrier")
    a("v_lshlrev_b32 v3, 5, v1")
    a(f"v_add_u32 v3, {SC}, v3")
    a("ds_read_b128 v[16:19], v3")
    a("ds_read_b128 v[20:23], v3 offset:16")
    a("v_lshrrev_b32 v4, 4, v1")
    a("v_bfe_u32 v5, v1, 2, 2")
    a("v_bfe_u32 v6, v1, 1, 1")
    a("v_and_b32 v7, 1, v1")
    a("v_lshlrev_b32 v8, 16, v6")
    a("v_lshlrev_b32 v9, 10, v4")
    a("v_add_u32 v8, v8, v9")
    a("v_lshlrev_b32 v9, 7, v5")
    a("v_add_u32 v8, v8, v9")
    a("v_lshlrev_b32 v9, 3, v7")
    a("v_add_u32 v8, v8, v9")
    a("v_lshrrev_b32 v9, 1, v5")
    a("v_and_b32 v10, 1, v4")
    a("v_lshlrev_b32 v10, 1, v10")
    a("v_or_b32 v9, v9, v10")
    a("v_lshlrev_b32 v10, 2, v6")
    a("v_or_b32 v9, v9, v10")
    a("v_xor_b32 v9, s3, v9")
    a("v_lshlrev_b32 v9, 4, v9")
    a("v_add_u32 v8, v8, v9")
    W = 64
    a("s_waitcnt lgkmcnt(0)")
    for ks in range(16):
        r = W + 4 * ks
        for half in range(2):
            a(f"ds_read_b64_tr_b16 v[{r+2*half}:{r+2*half+1}], v8 offset:{ks*4096 + half*512}")
        if ks % 4 == 3:
            a("s_waitcnt lgkmcnt(0)")
    xs = [f"v{16+j}" for j in range(8)]
    ln_stats(a, xs, "v24", "v25", "v26", "v27", "v28")
    for j in range(8):
        ln_apply(a, xs[j], "v27", "v28", "v26", "v24", "v25")
    for j in range(4):
        a(f"v_cvt_pk_bf16_f32 v{32+j}, v{16+2*j}, v{17+2*j}")
    a("s_lshl_b32 s8, s3, 10")
    a(f"s_add_u32 s8, s8, {SC+2048}")
    a("v_lshlrev_b32 v3, 4, v1")
    a("v_add_u32 v3, s8, v3")
    a("ds_write_b128 v3, v[32:35]")
    a("v_lshlrev_b32 v3, 4, v4")
    a("v_add_u32 v3, s8, v3")
    a("s_waitcnt lgkmcnt(0)")
    B = 128
    for ks in range(16):
        a(f"ds_read_b128 v[{B+4*ks}:{B+4*ks+3}], v3 offset:{64*ks}")
        if ks % 8 == 7:
            a("s_waitcnt lgkmcnt(0)")
    for ks in range(16):
        c = "0" if ks == 0 else "v[36:39]"
        a(f"v_mfma_f32_16x16x32_bf16 v[36:39], v[{W+4*ks}:{W+4*ks+3}], v[{B+4*ks}:{B+4*ks+3}], {c}")
    a(f"s_mov_b32 s12, {LOG2E:#x}")
    for r in range(4):
        bf16r(a, f"v{36+r}", f"v{36+r}")
        a(f"v_mov_b32 v{40+r}, v{36+r}")
        a(f"v_permlane32_swap_b32 v{36+r}, v{40+r}")
    for r in range(4):
        a(f"v_mul_f32 v44, s12, v{36+r}")
        a(f"v_exp_f32 v44, -v44")
        a(f"v_add_f32 v44, 1.0, v44")
        a(f"v_rcp_f32 v45, v44")
        a(f"v_fma_f32 v46, -v44, v45, 1.0")
        a(f"v_fma_f32 v45, v46, v45, v45")
        bf16r(a, "v45", "v45")
        a(f"v_mul_f32 v{36+r}, v45, v{40+r}")
    a("v_cvt_pk_bf16_f32 v36, v36, v37")
    a("v_cvt_pk_bf16_f32 v37, v38, v39")
    a("v_lshlrev_b32 v3, 3, v4")
    a("s_lshl_b32 s8, s2, 7")
    a("s_lshl_b32 s9, s3, 4")
    a("s_add_u32 s8, s8, s9")
    a(f"s_add_u32 s8, s8, {HID_OFF}")
    a("v_and_b32 v7, 0x2f, v1")
    a("v_cmp_eq_u32 vcc, 0, v7")
    a("s_and_saveexec_b64 s[10:11], vcc")
    a("buffer_store_dwordx2 v[36:37], v3, s[52:55], s8 offen")
    a("L4_done:")
    a("s_endpgm")
    return name, a.maxv + 1, a.maxs + 1


def k_down(a):
    name = "k5_down_kernel"
    kernel_begin(a, name)
    a("s_cmp_ge_u32 s2, 32")
    a("s_cbranch_scc1 L5_done")
    load_args(a)
    a("v_lshrrev_b32 v1, 6, v0")
    a("v_readfirstlane_b32 s3, v1")
    a("v_and_b32 v1, 63, v0")
    a("s_waitcnt lgkmcnt(0)")
    srd(a, 40, sWD, 1792 * 1024)
    srd(a, 48, sOUT, 1024)
    srd(a, 52, sWS, 0x200000)
    a("v_lshrrev_b32 v2, 1, v1")
    a("v_bfe_u32 v3, v1, 4, 1")
    a("v_lshlrev_b32 v3, 2, v3")
    a("v_xor_b32 v2, v2, v3")
    a("v_lshlrev_b32 v2, 10, v2")
    a("v_and_b32 v3, 1, v1")
    a("v_lshlrev_b32 v3, 4, v3")
    a("v_add_u32 v2, v2, v3")
    a("s_lshl_b32 s5, s2, 5")
    a(f"s_mul_i32 s6, s3, {7*32*1024}")
    a("s_add_u32 s5, s5, s6")
    a(f"s_mul_i32 s7, s3, {7*1024}")
    for jj in range(7):
        a(f"s_add_u32 s8, s5, {jj*32*1024}")
        a(f"s_add_u32 m0, s7, {jj*1024}")
        a("buffer_load_dwordx4 v2, s[40:43], s8 offen lds")
    a("v_lshrrev_b32 v4, 4, v1")
    a("v_lshlrev_b32 v3, 4, v4")
    a(f"s_mul_i32 s8, s3, 448")
    a(f"s_add_u32 s8, s8, {HID_OFF}")
    B = 64
    for ks in range(7):
        a(f"buffer_load_dwordx4 v[{B+4*ks}:{B+4*ks+3}], v3, s[52:55], s8 offen offset:{64*ks}")
    a("v_and_b32 v5, 15, v0")
    a("v_lshlrev_b32 v5, 2, v5")
    a("s_lshl_b32 s9, s2, 6")
    a(f"s_add_u32 s9, s9, {H_OFF}")
    a("buffer_load_dword v20, v5, s[52:55], s9 offen")
    a("v_bfe_u32 v5, v1, 2, 2")
    a("v_and_b32 v6, 3, v1")
    a("v_lshlrev_b32 v7, 3, v4")
    a("v_add_u32 v7, v7, v5")
    a("v_and_b32 v8, 1, v4")
    a("v_lshlrev_b32 v8, 2, v8")
    a("v_xor_b32 v9, v7, v8")
    a("v_xor_b32 v10, 4, v9")
    a("v_lshlrev_b32 v6, 3, v6")
    a("v_lshlrev_b32 v9, 5, v9")
    a("v_lshlrev_b32 v10, 5, v10")
    a("v_add_u32 v9, v9, v6")
    a("v_add_u32 v10, v10, v6")
    a("v_add_u32 v9, s7, v9")
    a("v_add_u32 v10, s7, v10")
    a("s_waitcnt vmcnt(0)")
    W = 32
    for ks in range(7):
        a(f"ds_read_b64_tr_b16 v[{W+4*ks}:{W+4*ks+1}], v9 offset:{ks*1024}")
        a(f"ds_read_b64_tr_b16 v[{W+4*ks+2}:{W+4*ks+3}], v10 offset:{ks*1024}")
    a("s_waitcnt lgkmcnt(0)")
    for ks in range(7):
        c = "0" if ks == 0 else "v[12:15]"
        a(f"v_mfma_f32_16x16x32_bf16 v[12:15], v[{W+4*ks}:{W+4*ks+3}], v[{B+4*ks}:{B+4*ks+3}], {c}")
    SC = 57344
    a("s_lshl_b32 s8, s3, 6")
    a(f"s_add_u32 s8, s8, {SC}")
    a("v_add_u32 v3, s8, v3")
    a("ds_write_b128 v3, v[12:15]")
    a("s_waitcnt lgkmcnt(0)")
    a("s_barrier")
    a("v_cmp_gt_u32 vcc, 16, v0")
    a("s_and_saveexec_b64 s[10:11], vcc")
    a("s_cbranch_execz L5_done")
    a("v_lshlrev_b32 v3, 2, v0")
    for w in range(8):
        a(f"ds_read_b32 v{12+w}, v3 offset:{SC+64*w}")
    a("s_waitcnt lgkmcnt(0)")
    for w in range(1, 8):
        a(f"v_add_f32 v12, v12, v{12+w}")
    bf16r(a, "v12", "v12")
    a("v_add_f32 v12, v12, v20")
    a("v_cvt_pk_bf16_f32 v12, v12, v12")
    a("v_lshlrev_b32 v3, 1, v0")
    a("s_lshl_b32 s8, s2, 5")
    a("buffer_store_short v12, v3, s[48:51], s8 offen")
    a("L5_done:")
    a("s_endpgm")
    return name, a.maxv + 1, a.maxs + 1


def build(path, mode=0, nt=True):
    a = Asm()
    ks = []
    ks.append(k_qproj(a) + ((64, 512, 2048),))
    ks.append(k_attn(a, mode, nt) + ((256, 512, 16384 + 256),))
    ks.append(k_oproj(a) + ((32, 512, 131072 + 4096 + 256),))
    ks.append(k_gateup(a) + ((28, 512, 131072 + 2048 + 8192),))
    ks.append(k_down(a) + ((32, 512, 57344 + 512),))
    head = []
    for name, nv, ns, (g, b, lds) in ks:
        head.append(f"; @launch kernel={name} grid=({g},1,1) block=({b},1,1) lds={lds}")
    head.append('.amdgcn_target "amdgcn-amd-amdhsa--gfx950"')
    desc = ['.section .rodata,"a"']
    for name, nv, ns, _ in ks:
        nv4 = (nv + 3) // 4 * 4
        desc.append(kernel_desc(name, nv4, max(ns, 16), nv4))
    open(path, "w").write("\n".join(head) + "\n" + a.text() + "\n".join(desc))


if __name__ == "__main__":
    build("v1_m0_nt.s", 0, True)
    build("v1_m1_nt.s", 1, True)
    build("v1_m0_pl.s", 0, False)
    build("v1_m1_pl.s", 1, False)
```

```python
import sys
from asmlib import Asm, kernel_begin, kernel_desc
from gen1 import (load_args, srd, red_rows, red64, bf16r, unpack, ln_stats, ln_apply,
                  sX, sK, sV, sWQ, sWO, sBX, sWG, sWU, sWD, sOUT, sDBG, sWS, SCALE, LOG2E, EPS)

NAME = "sequential_preLN__gqa_block_cached__glu_gated_glu__decode"
Q_OFF = 0x0
RST_OFF = 0x10000
ML_OFF = 0x10000
ATT_OFF = 0x12000
HID_OFF = 0x22000
H_OFF = 0x23000
PO_OFF = 0x24000
RST_PER = 10 * 1024
QG_OFF = 0x4000
EPOCH_OFF = 0x0
B0, C0, D0 = 64, 96, 128
TS_OFF = 0x100000
WS_BYTES = 0x200000
assert PO_OFF + 0x80000 <= RST_OFF + 64 * RST_PER

LDS_SC = 131072
LDS_ML = LDS_SC + 16384
LDS_Q = LDS_ML + 256
LDS_QP = LDS_Q + 1024
LDS_TOTAL = LDS_QP + 2048
SPIN = 20000


class G:
    pass


def stamp(a, cfg, idx):
    if not cfg.ts:
        return
    l = a.uid("L_ts")
    a(f"s_cmp_lg_u32 s3, {cfg.ts_wave}")
    a(f"s_cbranch_scc1 {l}")
    a("s_memrealtime s[60:61]")
    a("s_lshl_b32 s62, s2, 7")
    a(f"s_add_u32 s62, s62, {TS_OFF + idx*8}")
    a("s_waitcnt lgkmcnt(0)")
    a("v_mov_b32 v254, s60")
    a("v_mov_b32 v255, s61")
    a("v_mov_b32 v253, 0")
    a("s_mov_b64 s[64:65], exec")
    a("s_mov_b64 exec, 1")
    a("buffer_store_dwordx2 v[254:255], v253, s[52:55], s62 offen")
    a("s_mov_b64 exec, s[64:65]")
    a(f"{l}:")


def poll(a, groups, sleep=1):
    n = len(groups)
    L = a.uid("L_poll")
    a(f"s_mov_b32 s56, {(1 << n) - 1}")
    a(f"s_mov_b32 s57, {SPIN}")
    a(f"{L}:")
    for i, (loads, regs) in enumerate(groups):
        if n > 1:
            a(f"s_bitcmp1_b32 s56, {i}")
            a(f"s_cbranch_scc0 {L}_s{i}")
        for ld in loads:
            a(ld)
        if n > 1:
            a(f"{L}_s{i}:")
    a("s_waitcnt vmcnt(0)")
    a("s_mov_b32 s56, 0")
    for i, (loads, regs) in enumerate(groups):
        t = "v252"
        rs = list(regs)
        if len(rs) == 1:
            a(f"v_cmp_eq_u32 vcc, -1, {rs[0]}")
        else:
            if len(rs) >= 3:
                a(f"v_max3_u32 {t}, {rs[0]}, {rs[1]}, {rs[2]}")
                rs = rs[3:]
            else:
                a(f"v_max_u32 {t}, {rs[0]}, {rs[1]}")
                rs = rs[2:]
            while len(rs) >= 2:
                a(f"v_max3_u32 {t}, {t}, {rs[0]}, {rs[1]}")
                rs = rs[2:]
            if rs:
                a(f"v_max_u32 {t}, {t}, {rs[0]}")
            a(f"v_cmp_eq_u32 vcc, -1, {t}")
        a("s_cmp_eq_u64 vcc, 0")
        a(f"s_cselect_b32 s58, 0, {1 << i}")
        a("s_or_b32 s56, s56, s58")
    a("s_cmp_eq_u32 s56, 0")
    a(f"s_cbranch_scc1 {L}_done")
    a("s_sub_u32 s57, s57, 1")
    a("s_cmp_eq_u32 s57, 0")
    a(f"s_cbranch_scc1 {L}_done")
    if sleep:
        a(f"s_sleep {sleep}")
    a(f"s_branch {L}")
    a(f"{L}_done:")


def flagcheck(a):
    L = a.uid("L_fc")
    a("v_min_u32 v250, 59, v1")
    a("v_lshlrev_b32 v250, 2, v250")
    a(f"s_mov_b32 s57, {SPIN}")
    a(f"{L}:")
    a("buffer_load_dword v251, v250, s[48:51], 0 offen sc0 sc1")
    a("s_waitcnt vmcnt(0)")
    a("v_cmp_eq_u32 vcc, 0, v251")
    a("s_cmp_eq_u64 vcc, 0")
    a(f"s_cbranch_scc1 {L}_d")
    a("s_sub_u32 s57, s57, 1")
    a("s_cmp_eq_u32 s57, 0")
    a(f"s_cbranch_scc1 {L}_d")
    a("s_sleep 2")
    a(f"s_branch {L}")
    a(f"{L}_d:")


def build(path, mode=1, nt=True, ts=False, ts_wave=0, sc=" sc1", H=4, TH=8):
    cfg = G()
    cfg.ts = ts
    cfg.ts_wave = ts_wave
    ntf = " nt" if nt else ""
    a = Asm()
    name = NAME + "_kernel"
    kernel_begin(a, name)
    a("s_cmp_ge_u32 s2, 256")
    a("s_cbranch_scc1 L_done")
    load_args(a)
    a("v_lshrrev_b32 v1, 6, v0")
    a("v_readfirstlane_b32 s3, v1")
    a("v_and_b32 v1, 63, v0")
    a("v_lshlrev_b32 v2, 4, v1")
    a("v_and_b32 v3, 3, v1")
    a("v_lshlrev_b32 v3, 10, v3")
    a("v_bfe_u32 v4, v1, 2, 2")
    a("v_lshlrev_b32 v4, 8, v4")
    a("v_add_u32 v3, v3, v4")
    a("v_lshrrev_b32 v4, 4, v1")
    a("v_lshlrev_b32 v4, 4, v4")
    a("v_add_u32 v3, v3, v4")
    a("v_add_u32 v5, 0x1000, v3")
    a("s_and_b32 s4, s2, 7")
    a("s_lshr_b32 s5, s2, 3")
    a("s_lshl_b32 s6, s5, 3")
    a("s_add_u32 s6, s6, s3")
    a("s_lshl_b32 s7, s4, 24")
    if mode == 0:
        a("s_lshl_b32 s8, s6, 16")
        stride = 8192
    else:
        a("s_lshl_b32 s8, s6, 13")
        stride = 256 * 8192
    a("s_waitcnt lgkmcnt(0)")
    srd(a, 40, sK, 1 << 24, "s7")
    srd(a, 44, sV, 1 << 24, "s7")
    srd(a, 48, sDBG, 256)
    srd(a, 52, sWS, WS_BYTES)
    a(f"s_load_dword s15, s[{sWS}:{sWS+1}], {EPOCH_OFF}")
    stamp(a, cfg, 0)

    Q = 8
    O = 24
    P = 56
    S = 88
    T = 96
    MX, LS, TA, TB, TC, TD = "v112", "v113", "v114", "v115", "v116", "v117"
    RING = 120
    NU = 4

    def issue(u):
        if u >= 16:
            return
        r0 = RING + 32 * (u % NU)
        t = u % 8
        a(f"s_add_u32 s10, s8, {t*stride}")
        if u < 8:
            for h in range(2):
                for i in range(4):
                    r = r0 + 16 * h + 4 * i
                    a(f"buffer_load_dwordx4 v[{r}:{r+3}], {'v3' if h == 0 else 'v5'}, s[40:43], s10 offen offset:{64*i}{ntf}")
        else:
            for i in range(8):
                if i == 4:
                    a("s_add_u32 s10, s10, 4096")
                r = r0 + 4 * i
                a(f"buffer_load_dwordx4 v[{r}:{r+3}], v2, s[44:47], s10 offen offset:{1024*(i%4)}{ntf}")


    def ring_loads(u):
        out = []
        r0 = RING + 32 * (u % NU)
        t = u % 8
        for n in range(8):
            grp = []
            if n == 0:
                grp.append(f"s_add_u32 s10, s8, {t*stride}")
            h, i = divmod(n, 4)
            r = r0 + 4 * n
            grp.append(f"buffer_load_dwordx4 v[{r}:{r+3}], {'v3' if h == 0 else 'v5'}, s[40:43], s10 offen offset:{64*i}{ntf}")
            out.append(grp)
        return out

    def emit_groups(groups, throttle=None, already=0):
        n = already
        for grp in groups:
            if throttle is not None and n >= throttle:
                a(f"s_waitcnt vmcnt({throttle-1})")
            for l in grp:
                a(l)
            n += 1

    srd(a, 68, sX, 1024)
    srd(a, 72, sWQ, 512 * 8192)
    a("s_lshl_b32 s9, s4, 5")
    a("s_add_u32 s9, s9, s5")
    a("buffer_load_dwordx4 v[8:11], v2, s[68:71], 0 offen")
    a("s_lshl_b32 s11, s3, 7")
    a("buffer_load_dwordx4 v[12:15], v4, s[68:71], s11 offen")
    a("buffer_load_dwordx4 v[16:19], v4, s[68:71], s11 offen offset:64")
    a("v_lshrrev_b32 v6, 1, v1")
    a("v_bfe_u32 v7, v1, 4, 1")
    a("v_lshlrev_b32 v7, 2, v7")
    a("v_xor_b32 v6, v6, v7")
    a("v_lshlrev_b32 v6, 13, v6")
    a("v_and_b32 v7, 1, v1")
    a("v_lshlrev_b32 v7, 4, v7")
    a("v_add_u32 v6, v6, v7")
    a("s_lshl_b32 s11, s9, 5")
    a("s_lshl_b32 s12, s3, 19")
    a("s_add_u32 s11, s11, s12")
    a("s_lshl_b32 s12, s3, 11")
    a(f"s_add_u32 s12, s12, {LDS_SC}")
    for jj in range(2):
        a(f"s_add_u32 s13, s11, {jj*32*8192}")
        a(f"s_add_u32 m0, s12, {jj*1024}")
        a("buffer_load_dwordx4 v6, s[72:75], s13 offen lds")
    u0 = ring_loads(0)
    a("s_cmp_eq_u32 s3, 0")
    a("s_cbranch_scc1 L_w0_rst")
    emit_groups(u0[:H])
    a(f"s_waitcnt vmcnt({H+2})")
    a("s_branch L_qcomp")
    a("L_w0_rst:")
    for j in range(4):
        a(f"v_mov_b32 v{80+j}, -1")
    a("v_lshrrev_b32 v6, 5, v1")
    a("v_lshlrev_b32 v6, 14, v6")
    a("v_and_b32 v7, 31, v1")
    a("v_lshlrev_b32 v7, 4, v7")
    a("v_add_u32 v6, v6, v7")
    a("s_lshl_b32 s11, s4, 16")
    a("s_lshl_b32 s13, s5, 9")
    a("s_add_u32 s11, s11, s13")
    a(f"s_add_u32 s11, s11, {PO_OFF}")
    a("buffer_store_dwordx4 v[80:83], v6, s[52:55], s11 offen sc0 sc1")
    a("s_add_u32 s11, s11, 0x8000")
    a("buffer_store_dwordx4 v[80:83], v6, s[52:55], s11 offen sc0 sc1")
    a("v_lshlrev_b32 v6, 8, v1")
    a("s_lshl_b32 s11, s4, 10")
    a("s_lshl_b32 s13, s5, 3")
    a("s_add_u32 s11, s11, s13")
    a(f"s_add_u32 s11, s11, {ML_OFF}")
    a("s_mov_b64 exec, 0xf")
    a("buffer_store_dwordx2 v[80:81], v6, s[52:55], s11 offen sc0 sc1")
    a("s_mov_b64 exec, -1")
    a(f"s_cmp_lt_u32 s2, {B0}")
    a("s_cbranch_scc1 L_rst_done")
    a(f"s_cmp_lt_u32 s2, {B0+32}")
    a("s_cbranch_scc1 L_rst_B")
    a(f"s_cmp_lt_u32 s2, {C0+28}")
    a("s_cbranch_scc0 L_rst_done")
    a(f"s_sub_u32 s11, s2, {C0}")
    a("s_lshl_b32 s11, s11, 7")
    a(f"s_add_u32 s11, s11, {HID_OFF}")
    a("s_mov_b64 exec, 0xff")
    a("buffer_store_dwordx4 v[80:83], v2, s[52:55], s11 offen sc0 sc1")
    a("s_mov_b64 exec, -1")
    a(f"s_cmp_lg_u32 s2, {C0}")
    a("s_cbranch_scc1 L_rst_done")
    a(f"s_mov_b32 s11, {H_OFF}")
    a("s_branch L_rst_2k")
    a("L_rst_B:")
    a(f"s_sub_u32 s11, s5, {B0//8}")
    a("s_lshl_b32 s13, s4, 2")
    a("s_add_u32 s11, s11, s13")
    a("s_lshl_b32 s11, s11, 11")
    a(f"s_add_u32 s11, s11, {ATT_OFF}")
    a("L_rst_2k:")
    a("buffer_store_dwordx4 v[80:83], v2, s[52:55], s11 offen sc0 sc1")
    a("buffer_store_dwordx4 v[80:83], v2, s[52:55], s11 offen offset:1024 sc0 sc1")
    a("L_rst_done:")
    a("s_waitcnt vmcnt(0)")
    a("L_qcomp:")
    stamp(a, cfg, 9)
    xs = [f"v{24+j}" for j in range(8)]
    xo = [f"v{32+j}" for j in range(16)]
    for j in range(4):
        unpack(a, xs[2*j], xs[2*j+1], f"v{8+j}")
    ln_stats(a, xs, "v64", "v65", "v66", "v67", "v68")
    for j in range(8):
        unpack(a, xo[2*j], xo[2*j+1], f"v{12+j}")
    for j in range(16):
        ln_apply(a, xo[j], "v67", "v68", "v66", "v64", "v65")
    for j in range(8):
        a(f"v_cvt_pk_bf16_f32 v{12+j}, {xo[2*j]}, {xo[2*j+1]}")
    a("v_lshrrev_b32 v6, 4, v1")
    a("v_bfe_u32 v7, v1, 2, 2")
    a("v_lshlrev_b32 v64, 3, v6")
    a("v_add_u32 v64, v64, v7")
    a("v_and_b32 v65, 1, v6")
    a("v_lshlrev_b32 v65, 2, v65")
    a("v_xor_b32 v64, v64, v65")
    a("v_xor_b32 v65, 4, v64")
    a("v_and_b32 v7, 3, v1")
    a("v_lshlrev_b32 v7, 3, v7")
    a("v_lshlrev_b32 v64, 5, v64")
    a("v_lshlrev_b32 v65, 5, v65")
    a("v_add3_u32 v64, v64, v7, s12")
    a("v_add3_u32 v65, v65, v7, s12")
    a("s_cmp_eq_u32 s3, 0")
    a("s_cbranch_scc1 L_q_landed")
    a(f"s_waitcnt vmcnt({H})")
    a("L_q_landed:")
    for ks in range(2):
        a(f"ds_read_b64_tr_b16 v[{48+4*ks}:{49+4*ks}], v64 offset:{ks*1024}")
        a(f"ds_read_b64_tr_b16 v[{50+4*ks}:{51+4*ks}], v65 offset:{ks*1024}")
    a("s_lshl_b32 s11, s3, 6")
    a(f"s_add_u32 s11, s11, {LDS_QP}")
    a("v_add_u32 v6, s11, v4")
    a("s_waitcnt lgkmcnt(0)")
    a("v_mfma_f32_16x16x32_bf16 v[56:59], v[48:51], v[12:15], 0")
    a("v_mfma_f32_16x16x32_bf16 v[56:59], v[52:55], v[16:19], v[56:59]")
    a("ds_write_b128 v6, v[56:59]")
    a("s_waitcnt lgkmcnt(0)")
    a("s_barrier")
    a("s_cmp_lg_u32 s3, 0")
    a("s_cbranch_scc1 L_pre_w17")
    stamp(a, cfg, 10)
    a("v_and_b32 v6, 15, v1")
    a("v_lshlrev_b32 v6, 2, v6")
    a(f"v_add_u32 v7, {LDS_QP}, v6")
    for w in range(8):
        a(f"ds_read_b32 v{72+w}, v7 offset:{w*64}")
    a("s_add_u32 s15, s15, 1")
    a("s_lshl_b32 s11, s9, 6")
    a(f"s_add_u32 s11, s11, {QG_OFF}")
    a("v_mov_b32 v81, s15")
    a("s_waitcnt lgkmcnt(0)")
    for w in range(1, 8):
        a(f"v_add_f32 v72, v72, v{72+w}")
    a("v_mov_b32_dpp v73, v72 quad_perm:[1,0,3,2] row_mask:0xf bank_mask:0xf")
    a("v_cvt_pk_bf16_f32 v80, v72, v73")
    a("s_mov_b64 exec, 0x5555")
    a("buffer_store_dwordx2 v[80:81], v6, s[52:55], s11 offen sc0 sc1")
    a("s_mov_b64 exec, -1")
    a("s_barrier")
    a(f"s_cmp_lt_u32 s2, {B0}")
    a("s_cbranch_scc1 L_noflag")
    a(f"s_cmp_lt_u32 s2, {C0+28}")
    a("s_cbranch_scc0 L_noflag")
    a(f"s_sub_u32 s11, s2, {B0}")
    a("s_lshl_b32 s11, s11, 2")
    a("v_mov_b32 v72, 1")
    a("v_mov_b32 v73, 0")
    a("s_mov_b64 exec, 1")
    a("buffer_store_dword v72, v73, s[48:51], s11 offen sc0 sc1")
    a("s_mov_b64 exec, -1")
    a("L_noflag:")
    stamp(a, cfg, 1)
    a("s_lshl_b32 s11, s4, 11")
    a(f"s_add_u32 s11, s11, {QG_OFF}")
    a(f"s_mov_b32 s57, {SPIN}")
    a("L_pq_loop:")
    a("buffer_load_dwordx4 v[8:11], v2, s[52:55], s11 offen sc0 sc1")
    a("buffer_load_dwordx4 v[12:15], v2, s[52:55], s11 offen offset:1024 sc0 sc1")
    a("s_waitcnt vmcnt(0)")
    a("v_xor_b32 v9, s15, v9")
    a("v_xor_b32 v11, s15, v11")
    a("v_xor_b32 v13, s15, v13")
    a("v_xor_b32 v15, s15, v15")
    a("v_or3_b32 v9, v9, v11, v13")
    a("v_or_b32 v9, v9, v15")
    a("v_cmp_ne_u32 vcc, 0, v9")
    a("s_cmp_eq_u64 vcc, 0")
    a("s_cbranch_scc1 L_pq_done")
    a("s_sub_u32 s57, s57, 1")
    a("s_cmp_eq_u32 s57, 0")
    a("s_cbranch_scc1 L_pq_done")
    a("s_sleep 1")
    a("s_branch L_pq_loop")
    a("L_pq_done:")
    stamp(a, cfg, 2)
    a("v_lshlrev_b32 v6, 3, v1")
    a(f"v_add_u32 v6, {LDS_Q}, v6")
    a("v_mov_b32 v9, v10")
    a("v_mov_b32 v13, v14")
    a("ds_write_b64 v6, v[8:9]")
    a("ds_write_b64 v6, v[12:13] offset:512")
    a("s_waitcnt lgkmcnt(0)")
    a("s_barrier")
    stamp(a, cfg, 3)
    a("s_mov_b32 s59, 1")
    a("s_branch L_pre_roles")
    a("L_pre_w17:")
    a("s_barrier")
    a("s_mov_b32 s59, 0")
    a("L_pre_roles:")
    a(f"s_cmp_lt_u32 s2, {B0}")
    a("s_cbranch_scc1 L_preN")
    a(f"s_cmp_lt_u32 s2, {B0+32}")
    a("s_cbranch_scc1 L_preB")
    a(f"s_cmp_lt_u32 s2, {C0+28}")
    a("s_cbranch_scc1 L_preC")
    a(f"s_cmp_lt_u32 s2, {D0}")
    a("s_cbranch_scc1 L_preN")
    a(f"s_cmp_lt_u32 s2, {D0+32}")
    a("s_cbranch_scc1 L_preD")
    a("s_branch L_preN")

    def pre_tail(tag, dma):
        rest = []
        for u in range(1, NU):
            rest += ring_loads(u)
        a("s_cmp_eq_u32 s59, 1")
        a(f"s_cbranch_scc1 L_pt0_{tag}")
        u0r = [list(x) for x in u0[H:]]
        if u0r:
            u0r[0] = ["s_mov_b32 s10, s8"] + u0r[0]
        emit_groups(dma + u0r + rest, throttle=TH, already=H)
        a("s_branch L_waitq")
        a(f"L_pt0_{tag}:")
        emit_groups(dma + u0 + rest)
        a("s_branch L_haveq")

    a("L_preB:")
    a(f"s_sub_u32 s9, s5, {B0//8}")
    a("s_lshl_b32 s11, s4, 2")
    a("s_add_u32 s9, s9, s11")
    a("s_lshl_b32 s11, s9, 17")
    srd(a, 68, sWO, 1 << 17, "s11")
    a("s_lshl_b32 s11, s3, 14")
    dma = []
    for j in range(16):
        f = (j & 3) | (((j >> 3) & 1) << 2)
        dma.append([f"v_xor_b32 v6, {f << 5}, v2", f"s_add_u32 s12, s11, {j*1024}", "s_mov_b32 m0, s12",
                    f"buffer_load_dwordx4 v6, s[68:71], s12 offen{ntf} lds"])
    pre_tail("B", dma)

    a("L_preC:")
    a(f"s_sub_u32 s9, s2, {C0}")
    srd(a, 68, sWG, 512 * 3584)
    srd(a, 72, sWU, 512 * 3584)
    a("v_lshrrev_b32 v6, 3, v1")
    a("s_movk_i32 s11, 3584")
    a("v_mul_lo_u32 v6, v6, s11")
    a("v_and_b32 v7, 7, v1")
    a("v_bfe_u32 v8, v1, 4, 1")
    a("v_xor_b32 v7, v7, v8")
    for var in range(4):
        fx = ((var & 1) << 1) | ((var >> 1) << 2)
        a(f"v_xor_b32 v8, {fx}, v7")
        a("v_lshlrev_b32 v8, 4, v8")
        a(f"v_add_u32 v{10+var}, v6, v8")
    a("s_lshl_b32 s11, s9, 7")
    a(f"s_mul_i32 s12, s3, {8*8*3584}")
    a("s_add_u32 s11, s11, s12")
    a("s_lshl_b32 s12, s3, 13")
    dma = []
    for reg in range(2):
        for jj in range(8):
            dma.append([f"s_add_u32 s13, s11, {jj*8*3584}", f"s_add_u32 m0, s12, {reg*65536 + jj*1024}",
                        f"buffer_load_dwordx4 v{10 + (jj & 1) + 2*reg}, s[{68+4*reg}:{71+4*reg}], s13 offen{ntf} lds"])
    pre_tail("C", dma)

    a("L_preD:")
    a(f"s_sub_u32 s9, s2, {D0}")
    a("s_and_b32 s11, s9, 7")
    a("s_lshl_b32 s11, s11, 2")
    a("s_lshr_b32 s9, s9, 3")
    a("s_add_u32 s9, s9, s11")
    srd(a, 68, sWD, 1792 * 1024)
    a("v_lshrrev_b32 v6, 1, v1")
    a("v_bfe_u32 v7, v1, 4, 1")
    a("v_lshlrev_b32 v7, 2, v7")
    a("v_xor_b32 v6, v6, v7")
    a("v_lshlrev_b32 v6, 10, v6")
    a("v_and_b32 v7, 1, v1")
    a("v_lshlrev_b32 v7, 4, v7")
    a("v_add_u32 v6, v6, v7")
    a("s_lshl_b32 s11, s9, 5")
    a(f"s_mul_i32 s12, s3, {7*32*1024}")
    a("s_add_u32 s11, s11, s12")
    a(f"s_mul_i32 s12, s3, {7*1024}")
    dma = []
    for jj in range(7):
        dma.append([f"s_add_u32 s13, s11, {jj*32*1024}", f"s_add_u32 m0, s12, {jj*1024}",
                    "buffer_load_dwordx4 v6, s[68:71], s13 offen lds"])
    pre_tail("D", dma)

    a("L_preN:")
    pre_tail("N", [])

    a("L_waitq:")
    a("s_barrier")
    a("L_haveq:")
    a("v_and_b32 v6, 3, v1")
    a("v_lshlrev_b32 v6, 8, v6")
    a("v_add_u32 v6, v6, v4")
    a(f"v_add_u32 v6, {LDS_Q}, v6")
    for i in range(4):
        a(f"ds_read_b128 v[{Q+4*i}:{Q+4*i+3}], v6 offset:{64*i}")
    for j in range(32):
        a(f"v_mov_b32 v{O+j}, 0")
    a(f"v_mov_b32 {MX}, 0xff800000")
    a(f"v_mov_b32 {LS}, 0")
    a(f"s_mov_b32 s11, {SCALE:#x}")
    a(f"s_mov_b32 s12, {LOG2E:#x}")
    a("s_mov_b32 s13, 0x05040100")
    a("s_mov_b32 s14, 0x07060302")
    a("s_waitcnt lgkmcnt(0)")

    def outstanding_after(u):
        return 8 * (min(16, u + NU) - (u + 1))

    for t in range(8):
        r0 = RING + 32 * (t % NU)
        a(f"s_waitcnt vmcnt({outstanding_after(t)})")
        for h in range(2):
            for i in range(4):
                r = r0 + 16 * h + 4 * i
                c = "0" if i == 0 else f"v[{S+4*h}:{S+4*h+3}]"
                a(f"v_mfma_f32_16x16x32_bf16 v[{S+4*h}:{S+4*h+3}], v[{r}:{r+3}], v[{Q+4*i}:{Q+4*i+3}], {c}")
        issue(t + NU)
        for j in range(4):
            a(f"v_cvt_pk_bf16_f32 {TA}, v{S+2*j}, v{S+2*j+1}")
            unpack(a, TB, TC, TA)
            a(f"v_mul_f32 {TB}, s11, {TB}")
            a(f"v_mul_f32 {TC}, s11, {TC}")
            a(f"v_cvt_pk_bf16_f32 v{P+4*t+j}, {TB}, {TC}")
            a(f"v_max3_f32 {MX}, {TB}, {TC}, {MX}")
    red_rows(a, MX, TA, "v_max_f32")
    bf16r(a, MX, MX)
    a(f"v_mul_f32 {TD}, s12, {MX}")
    for t in range(8):
        u = 8 + t
        r0 = RING + 32 * (u % NU)
        for j in range(4):
            pr = f"v{P+4*t+j}"
            unpack(a, TA, TB, pr)
            a(f"v_fma_f32 {TA}, {TA}, s12, -{TD}")
            a(f"v_fma_f32 {TB}, {TB}, s12, -{TD}")
            a(f"v_exp_f32 {TA}, {TA}")
            a(f"v_exp_f32 {TB}, {TB}")
            a(f"v_add_f32 {LS}, {LS}, {TA}")
            a(f"v_cvt_pk_bf16_f32 {pr}, {TA}, {TB}")
            a(f"v_add_f32 {LS}, {LS}, {TB}")
        a(f"s_waitcnt vmcnt({outstanding_after(u)})")
        for j in range(4):
            tb = T + 8 * (j % 2)
            for p in range(4):
                lo_src = r0 + 4 * (2 * p) + j
                hi_src = r0 + 4 * (2 * p + 1) + j
                a(f"v_perm_b32 v{tb+p}, v{hi_src}, v{lo_src}, s13")
                a(f"v_perm_b32 v{tb+4+p}, v{hi_src}, v{lo_src}, s14")
            for e2 in range(2):
                e = 2 * j + e2
                a(f"v_mfma_f32_16x16x32_bf16 v[{O+4*e}:{O+4*e+3}], v[{tb+4*e2}:{tb+4*e2+3}], v[{P+4*t}:{P+4*t+3}], v[{O+4*e}:{O+4*e+3}]")
        issue(u + NU)
    red_rows(a, LS, TA, "v_add_f32")
    stamp(a, cfg, 4)
    a("v_and_b32 v3, 3, v1")
    a("v_lshlrev_b32 v3, 9, v3")
    a("v_lshlrev_b32 v5, 3, v4")
    a("v_add_u32 v3, v3, v5")
    a("s_lshl_b32 s10, s3, 11")
    a(f"s_add_u32 s10, s10, {LDS_SC}")
    a("v_add_u32 v3, s10, v3")
    for r in range(4):
        for e in range(8):
            a(f"v_mov_b32 v{RING+8*r+e}, v{O+4*e+r}")
    for r in range(4):
        a(f"ds_write_b128 v3, v[{RING+8*r}:{RING+8*r+3}] offset:{32*r}")
        a(f"ds_write_b128 v3, v[{RING+8*r+4}:{RING+8*r+7}] offset:{32*r+16}")
    a("v_and_b32 v5, 3, v1")
    a("v_lshlrev_b32 v5, 3, v5")
    a("s_lshl_b32 s10, s3, 5")
    a(f"s_add_u32 s10, s10, {LDS_ML}")
    a("v_add_u32 v5, s10, v5")
    a("ds_write_b64 v5, v[112:113]")
    a("s_waitcnt lgkmcnt(0)")
    a("s_barrier")
    a("s_cmp_ge_u32 s3, 2")
    a("s_cbranch_scc1 L_pub_done")
    a("v_lshrrev_b32 v3, 5, v0")
    a("v_lshlrev_b32 v5, 3, v3")
    a(f"v_add_u32 v5, {LDS_ML}, v5")
    a("v_lshlrev_b32 v6, 4, v0")
    a(f"v_add_u32 v6, {LDS_SC}, v6")
    for w in range(8):
        a(f"ds_read_b64 v[{8+2*w}:{9+2*w}], v5 offset:{32*w}")
    for w in range(7):
        a(f"ds_read_b128 v[{24+4*w}:{27+4*w}], v6 offset:{2048*w}")
    a("s_waitcnt lgkmcnt(7)")
    a(f"ds_read_b128 v[52:55], v6 offset:{2048*7}")
    a("v_max3_f32 v56, v8, v10, v12")
    a("v_max3_f32 v56, v56, v14, v16")
    a("v_max3_f32 v56, v56, v18, v20")
    a("v_max_f32 v56, v56, v22")
    for w in range(8):
        a(f"v_sub_f32 v{8+2*w}, v{8+2*w}, v56")
        a(f"v_mul_f32 v{8+2*w}, s12, v{8+2*w}")
        a(f"v_exp_f32 v{8+2*w}, v{8+2*w}")
    a("v_mul_f32 v57, v8, v9")
    for w in range(1, 8):
        a(f"v_fmac_f32 v57, v{8+2*w}, v{9+2*w}")
    a("s_waitcnt lgkmcnt(0)")
    for j in range(4):
        a(f"v_mul_f32 v{60+j}, v8, v{24+j}")
    for w in range(1, 8):
        for j in range(4):
            a(f"v_fmac_f32 v{60+j}, v{8+2*w}, v{24+4*w+j}")
    a("s_lshl_b32 s10, s4, 7")
    a("s_add_u32 s10, s10, s5")
    a("v_lshlrev_b32 v6, 5, v3")
    a("v_add_u32 v6, s10, v6")
    a("v_lshlrev_b32 v7, 9, v6")
    a("v_and_b32 v5, 31, v0")
    a("v_lshlrev_b32 v58, 4, v5")
    a("v_add_u32 v7, v7, v58")
    a(f"s_mov_b32 s10, {PO_OFF}")
    a("buffer_store_dwordx4 v[60:63], v7, s[52:55], s10 offen sc0 sc1")
    a("v_lshlrev_b32 v6, 3, v6")
    a(f"s_mov_b32 s10, {ML_OFF}")
    a("s_mov_b32 exec_lo, 1")
    a("s_mov_b32 exec_hi, 1")
    a("buffer_store_dwordx2 v[56:57], v6, s[52:55], s10 offen sc0 sc1")
    a("s_mov_b64 exec, -1")
    a("L_pub_done:")
    stamp(a, cfg, 5)
    a("s_cmp_lt_u32 s2, 64")
    a("s_cbranch_scc1 L_done")
    a("s_cmp_lt_u32 s2, 96")
    a("s_cbranch_scc1 L_stB")
    a("s_cmp_lt_u32 s2, 124")
    a("s_cbranch_scc1 L_stC")
    a("s_cmp_lt_u32 s2, 128")
    a("s_cbranch_scc1 L_done")
    a("s_cmp_lt_u32 s2, 160")
    a("s_cbranch_scc1 L_stD")
    a("s_branch L_done")

    a("L_stB:")
    a("v_lshrrev_b32 v3, 4, v1")
    a("v_bfe_u32 v4, v1, 2, 2")
    a("v_and_b32 v7, 3, v1")
    a("v_lshlrev_b32 v22, 13, v3")
    a("v_lshlrev_b32 v23, 10, v4")
    a("v_add_u32 v22, v22, v23")
    a("v_lshlrev_b32 v23, 3, v7")
    a("v_add_u32 v22, v22, v23")
    a("s_lshl_b32 s10, s3, 7")
    a("v_add_u32 v22, s10, v22")
    a("v_and_b32 v23, 1, v3")
    a("v_lshlrev_b32 v23, 2, v23")
    a("v_or_b32 v23, v23, v4")
    a("v_lshlrev_b32 v23, 5, v23")
    for nb in range(4):
        a(f"v_add_u32 v{24+nb}, {32*nb}, v22")
        a(f"v_xor_b32 v{24+nb}, v{24+nb}, v23")
        a(f"v_add_u32 v{28+nb}, 0x10000, v{24+nb}")
    W = 128
    for nb in range(4):
        for ks in range(4):
            r = W + 16 * nb + 4 * ks
            for half in range(2):
                off = ks * 32768 + half * 4096
                if off < 65536:
                    a(f"ds_read_b64_tr_b16 v[{r+2*half}:{r+2*half+1}], v{24+nb} offset:{off}")
                else:
                    a(f"ds_read_b64_tr_b16 v[{r+2*half}:{r+2*half+1}], v{28+nb} offset:{off-65536}")
        a("s_waitcnt lgkmcnt(0)")
    a("v_lshrrev_b32 v4, 5, v1")
    a("v_lshlrev_b32 v4, 9, v4")
    a("v_and_b32 v5, 31, v1")
    a("v_lshlrev_b32 v6, 4, v5")
    a("v_add_u32 v4, v4, v6")
    a("s_lshl_b32 s10, s9, 14")
    a("s_lshl_b32 s11, s3, 11")
    a("s_add_u32 s10, s10, s11")
    a(f"s_add_u32 s10, s10, {PO_OFF}")
    a("v_lshlrev_b32 v6, 3, v5")
    a("s_lshl_b32 s11, s9, 8")
    a(f"s_add_u32 s11, s11, {ML_OFF}")
    a("v_lshrrev_b32 v19, 5, v1")
    a("s_lshl_b32 s13, s3, 2")
    a("v_add_u32 v19, s13, v19")
    a("v_lshlrev_b32 v32, 2, v19")
    a("s_lshl_b32 s13, s3, 9")
    a(f"s_add_u32 s13, s13, {LDS_SC}")
    a("v_lshlrev_b32 v33, 4, v5")
    a("v_add_u32 v33, s13, v33")
    a("s_barrier")
    stamp(a, cfg, 6)
    poll(a, [
        (["buffer_load_dwordx4 v[8:11], v4, s[52:55], s10 offen sc0 sc1"], ["v8", "v9", "v10", "v11"]),
        (["buffer_load_dwordx4 v[12:15], v4, s[52:55], s10 offen offset:1024 sc0 sc1"], ["v12", "v13", "v14", "v15"]),
        (["buffer_load_dwordx2 v[16:17], v6, s[52:55], s11 offen sc0 sc1"], ["v16", "v17"]),
    ])
    stamp(a, cfg, 7)
    a("v_mov_b32 v18, v16")
    red64(a, "v18", "v19", "v_max_f32")
    a("v_sub_f32 v16, v16, v18")
    a("v_mul_f32 v16, s12, v16")
    a("v_exp_f32 v16, v16")
    a("v_mul_f32 v17, v16, v17")
    red64(a, "v17", "v19", "v_add_f32")
    a("v_mul_f32 v17, 0.5, v17")
    a("v_rcp_f32 v19, v17")
    a("v_mul_f32 v20, v16, v19")
    a("v_fma_f32 v21, -v20, v17, v16")
    a("v_fma_f32 v16, v21, v19, v20")
    a("ds_bpermute_b32 v20, v32, v16")
    a("ds_bpermute_b32 v21, v32, v16 offset:8")
    a("s_waitcnt lgkmcnt(0)")
    for j in range(4):
        a(f"v_mul_f32 v{8+j}, v20, v{8+j}")
        a(f"v_fmac_f32 v{8+j}, v21, v{12+j}")
    for j in range(4):
        a(f"v_mov_b32 v22, v{8+j}")
        a(f"v_permlane32_swap_b32 v22, v{8+j}")
        a(f"v_add_f32 v{8+j}, v22, v{8+j}")
    a("ds_write_b128 v33, v[8:11]")
    a("s_waitcnt lgkmcnt(0)")
    a("s_barrier")
    a("v_lshlrev_b32 v6, 3, v1")
    a(f"v_add_u32 v6, {LDS_SC}, v6")
    for w in range(8):
        a(f"ds_read_b64 v[{8+2*w}:{9+2*w}], v6 offset:{512*w}")
    a("s_lshl_b32 s13, s3, 8")
    a(f"s_add_u32 s13, s13, {LDS_SC+4096}")
    a("v_lshlrev_b32 v6, 2, v1")
    a("v_add_u32 v6, s13, v6")
    a("v_lshlrev_b32 v7, 4, v3")
    a("v_add_u32 v7, s13, v7")
    a("s_waitcnt lgkmcnt(0)")
    for w in range(1, 8):
        a(f"v_add_f32 v8, v8, v{8+2*w}")
        a(f"v_add_f32 v9, v9, v{9+2*w}")
    a("v_cvt_pk_bf16_f32 v8, v8, v9")
    a("ds_write_b32 v6, v8")
    a("s_waitcnt lgkmcnt(0)")
    for ks in range(4):
        a(f"ds_read_b128 v[{32+4*ks}:{35+4*ks}], v7 offset:{64*ks}")
    a("v_lshlrev_b32 v6, 4, v3")
    a("s_lshl_b32 s13, s3, 8")
    a("s_lshl_b32 s10, s9, 11")
    a("s_add_u32 s10, s10, s13")
    a(f"s_add_u32 s10, s10, {ATT_OFF}")
    a("s_waitcnt lgkmcnt(0)")
    for ks in range(4):
        for nb in range(4):
            r = W + 16 * nb + 4 * ks
            c = "0" if ks == 0 else f"v[{48+4*nb}:{51+4*nb}]"
            a(f"v_mfma_f32_16x16x32_bf16 v[{48+4*nb}:{51+4*nb}], v[{r}:{r+3}], v[{32+4*ks}:{35+4*ks}], {c}")
    a("v_and_b32 v7, 15, v1")
    for nb in range(1, 4):
        a(f"v_cmp_eq_u32 vcc, {nb}, v7")
        for j in range(4):
            a(f"v_cndmask_b32 v{48+j}, v{48+j}, v{48+4*nb+j}, vcc")
    a("v_lshlrev_b32 v7, 6, v7")
    a("v_add_u32 v6, v6, v7")
    a("s_mov_b32 exec_lo, 0x000f000f")
    a("s_mov_b32 exec_hi, 0x000f000f")
    a("buffer_store_dwordx4 v[48:51], v6, s[52:55], s10 offen sc0 sc1")
    a("s_mov_b64 exec, -1")
    stamp(a, cfg, 8)
    a("s_branch L_done")

    a("L_stC:")
    srd(a, 72, sX, 1024)
    a("v_lshrrev_b32 v4, 4, v1")
    a("v_bfe_u32 v5, v1, 2, 2")
    a("v_bfe_u32 v6, v1, 1, 1")
    a("v_and_b32 v7, 1, v1")
    a("v_lshlrev_b32 v8, 16, v6")
    a("v_lshlrev_b32 v9, 10, v4")
    a("v_add_u32 v8, v8, v9")
    a("v_lshlrev_b32 v9, 7, v5")
    a("v_add_u32 v8, v8, v9")
    a("v_lshlrev_b32 v9, 3, v7")
    a("v_add_u32 v8, v8, v9")
    a("v_lshrrev_b32 v9, 1, v5")
    a("v_and_b32 v10, 1, v4")
    a("v_lshlrev_b32 v10, 1, v10")
    a("v_or_b32 v9, v9, v10")
    a("v_lshlrev_b32 v10, 2, v6")
    a("v_or_b32 v9, v9, v10")
    a("v_xor_b32 v9, s3, v9")
    a("v_lshlrev_b32 v9, 4, v9")
    a("v_add_u32 v8, v8, v9")
    W = 128
    for ks in range(16):
        r = W + 4 * ks
        for half in range(2):
            a(f"ds_read_b64_tr_b16 v[{r+2*half}:{r+2*half+1}], v8 offset:{ks*4096 + half*512}")
        if ks % 4 == 3:
            a("s_waitcnt lgkmcnt(0)")
    a("v_and_b32 v5, 15, v1")
    a("v_lshlrev_b32 v6, 3, v5")
    a("s_lshl_b32 s10, s3, 7")
    a("buffer_load_dwordx2 v[48:49], v6, s[72:75], s10 offen")
    a("v_lshlrev_b32 v6, 11, v4")
    a("v_lshlrev_b32 v7, 4, v5")
    a("v_add_u32 v6, v6, v7")
    a("s_lshl_b32 s10, s3, 8")
    a(f"s_add_u32 s10, s10, {ATT_OFF}")
    for i in range(1, 8):
        a(f"s_add_u32 s{76+i}, s10, {i*8192}")
    a("s_mov_b32 s76, s10")
    a(f"v_add_u32 v7, {LDS_SC}, v7")
    a("s_lshl_b32 s13, s3, 8")
    a("v_add_u32 v7, s13, v7")
    a("v_lshlrev_b32 v3, 5, v1")
    a(f"v_add_u32 v3, {LDS_SC}, v3")
    a("s_waitcnt vmcnt(0)")
    for j in range(2):
        unpack(a, f"v{50+2*j}", f"v{51+2*j}", f"v{48+j}")
    flagcheck(a)
    a("s_barrier")
    stamp(a, cfg, 6)
    poll(a, [([f"buffer_load_dwordx4 v[{16+4*i}:{19+4*i}], v6, s[52:55], s{76+i} offen sc0 sc1"],
              [f"v{16+4*i+j}" for j in range(4)]) for i in range(8)])
    stamp(a, cfg, 7)
    for i in range(1, 8):
        for j in range(4):
            a(f"v_add_f32 v{16+j}, v{16+j}, v{16+4*i+j}")
    for j in range(4):
        red_rows(a, f"v{16+j}", "v20", "v_add_f32")
    for j in range(4):
        bf16r(a, f"v{16+j}", f"v{16+j}")
        a(f"v_add_f32 v{16+j}, v{16+j}, v{50+j}")
        bf16r(a, f"v{16+j}", f"v{16+j}")
    a("ds_write_b128 v7, v[16:19]")
    a("s_cmp_lg_u32 s9, 0")
    a("s_cbranch_scc1 L_C_noh")
    a("v_lshlrev_b32 v6, 4, v5")
    a("s_lshl_b32 s10, s3, 8")
    a(f"s_add_u32 s10, s10, {H_OFF}")
    a("s_mov_b64 exec, 0xffff")
    a("buffer_store_dwordx4 v[16:19], v6, s[52:55], s10 offen sc0 sc1")
    a("s_mov_b64 exec, -1")
    a("L_C_noh:")
    a("s_waitcnt lgkmcnt(0)")
    a("s_barrier")
    a("ds_read_b128 v[56:59], v3")
    a("ds_read_b128 v[60:63], v3 offset:16")
    a("s_lshl_b32 s10, s3, 10")
    a(f"s_add_u32 s10, s10, {LDS_SC+2048}")
    a("v_add_u32 v3, s10, v2")
    a("v_lshlrev_b32 v6, 4, v4")
    a("v_add_u32 v6, s10, v6")
    a("s_waitcnt lgkmcnt(0)")
    xs = [f"v{56+j}" for j in range(8)]
    ln_stats(a, xs, "v24", "v25", "v26", "v27", "v28")
    for j in range(8):
        ln_apply(a, xs[j], "v27", "v28", "v26", "v24", "v25")
    for j in range(4):
        a(f"v_cvt_pk_bf16_f32 v{32+j}, v{56+2*j}, v{57+2*j}")
    a("ds_write_b128 v3, v[32:35]")
    a("s_waitcnt lgkmcnt(0)")
    B = 64
    for ks in range(15):
        a(f"ds_read_b128 v[{B+4*ks}:{B+4*ks+3}], v6 offset:{64*ks}")
    a("s_waitcnt lgkmcnt(11)")
    a(f"ds_read_b128 v[{B+60}:{B+63}], v6 offset:{64*15}")
    for ks in range(16):
        if ks >= 4:
            a(f"s_waitcnt lgkmcnt({15-ks})")
        c = "0" if ks == 0 else "v[36:39]"
        a(f"v_mfma_f32_16x16x32_bf16 v[36:39], v[{W+4*ks}:{W+4*ks+3}], v[{B+4*ks}:{B+4*ks+3}], {c}")
    a("v_lshlrev_b32 v3, 3, v4")
    a("s_lshl_b32 s10, s9, 7")
    a("s_lshl_b32 s13, s3, 4")
    a("s_add_u32 s10, s10, s13")
    a(f"s_add_u32 s10, s10, {HID_OFF}")
    for r in range(4):
        bf16r(a, f"v{36+r}", f"v{36+r}")
    for r in range(4):
        a(f"v_mov_b32 v{40+r}, v{36+r}")
    for r in range(4):
        a(f"v_permlane32_swap_b32 v{36+r}, v{40+r}")
    for r in range(4):
        a(f"v_mul_f32 v{44+r}, s12, v{36+r}")
    for r in range(4):
        a(f"v_exp_f32 v{44+r}, -v{44+r}")
    for r in range(4):
        a(f"v_add_f32 v{44+r}, 1.0, v{44+r}")
    for r in range(4):
        a(f"v_rcp_f32 v{48+r}, v{44+r}")
    for r in range(4):
        a(f"v_fma_f32 v{44+r}, -v{44+r}, v{48+r}, 1.0")
    for r in range(4):
        a(f"v_fma_f32 v{48+r}, v{44+r}, v{48+r}, v{48+r}")
    for r in range(4):
        bf16r(a, f"v{48+r}", f"v{48+r}")
    for r in range(4):
        a(f"v_mul_f32 v{36+r}, v{48+r}, v{40+r}")
    a("v_cvt_pk_bf16_f32 v36, v36, v37")
    a("v_cvt_pk_bf16_f32 v37, v38, v39")
    a("s_mov_b64 exec, 0x10001")
    a("buffer_store_dwordx2 v[36:37], v3, s[52:55], s10 offen sc0 sc1")
    a("s_mov_b64 exec, -1")
    stamp(a, cfg, 8)
    a("s_branch L_done")

    a("L_stD:")
    srd(a, 72, sOUT, 1024)
    a("v_lshrrev_b32 v4, 4, v1")
    a("v_lshlrev_b32 v3, 4, v4")
    a("v_bfe_u32 v5, v1, 2, 2")
    a("v_and_b32 v6, 3, v1")
    a("v_lshlrev_b32 v7, 3, v4")
    a("v_add_u32 v7, v7, v5")
    a("v_and_b32 v8, 1, v4")
    a("v_lshlrev_b32 v8, 2, v8")
    a("v_xor_b32 v9, v7, v8")
    a("v_xor_b32 v10, 4, v9")
    a("v_lshlrev_b32 v6, 3, v6")
    a("v_lshlrev_b32 v9, 5, v9")
    a("v_lshlrev_b32 v10, 5, v10")
    a("v_add_u32 v9, v9, v6")
    a("v_add_u32 v10, v10, v6")
    a(f"s_mul_i32 s13, s3, {7*1024}")
    a("v_add_u32 v9, s13, v9")
    a("v_add_u32 v10, s13, v10")
    W = 128
    for ks in range(7):
        a(f"ds_read_b64_tr_b16 v[{W+4*ks}:{W+4*ks+1}], v9 offset:{ks*1024}")
        a(f"ds_read_b64_tr_b16 v[{W+4*ks+2}:{W+4*ks+3}], v10 offset:{ks*1024}")
    a("s_mul_i32 s10, s3, 448")
    a(f"s_add_u32 s10, s10, {HID_OFF}")
    a("v_and_b32 v5, 15, v1")
    a("v_lshlrev_b32 v5, 2, v5")
    a("s_lshl_b32 s11, s9, 6")
    a(f"s_add_u32 s11, s11, {H_OFF}")
    a("s_lshl_b32 s13, s3, 6")
    a(f"s_add_u32 s13, s13, {LDS_SC}")
    a("v_add_u32 v6, s13, v3")
    a(f"v_add_u32 v7, {LDS_SC}, v5")
    a("s_waitcnt lgkmcnt(0)")
    flagcheck(a)
    a("s_barrier")
    stamp(a, cfg, 6)
    B = 64
    poll(a, [([f"buffer_load_dwordx4 v[{B+4*ks}:{B+4*ks+3}], v3, s[52:55], s10 offen offset:{64*ks} sc0 sc1" for ks in range(7)]
              + ["buffer_load_dword v20, v5, s[52:55], s11 offen sc0 sc1"],
              [f"v{B+j}" for j in range(28)] + ["v20"])])
    stamp(a, cfg, 7)
    for ks in range(7):
        c = "0" if ks == 0 else "v[12:15]"
        a(f"v_mfma_f32_16x16x32_bf16 v[12:15], v[{W+4*ks}:{W+4*ks+3}], v[{B+4*ks}:{B+4*ks+3}], {c}")
    a("ds_write_b128 v6, v[12:15]")
    a("s_waitcnt lgkmcnt(0)")
    a("s_barrier")
    a("s_cmp_lg_u32 s3, 0")
    a("s_cbranch_scc1 L_done")
    for w in range(8):
        a(f"ds_read_b32 v{12+w}, v7 offset:{64*w}")
    a("v_lshrrev_b32 v3, 1, v5")
    a("s_lshl_b32 s10, s9, 5")
    a("s_waitcnt lgkmcnt(0)")
    for w in range(1, 8):
        a(f"v_add_f32 v12, v12, v{12+w}")
    bf16r(a, "v12", "v12")
    a("v_add_f32 v12, v12, v20")
    a("v_mov_b32_dpp v13, v12 quad_perm:[1,0,3,2] row_mask:0xf bank_mask:0xf")
    a("v_cvt_pk_bf16_f32 v12, v12, v13")
    a("s_mov_b64 exec, 0x5555")
    a("buffer_store_dword v12, v3, s[72:75], s10 offen")
    a("s_cmp_lg_u32 s9, 0")
    a("s_cbranch_scc1 L_noepoch")
    a("s_mov_b64 exec, 1")
    a("v_mov_b32 v12, s15")
    a("v_mov_b32 v13, 0")
    a(f"s_mov_b32 s10, {EPOCH_OFF}")
    a("buffer_store_dword v12, v13, s[52:55], s10 offen")
    a("L_noepoch:")
    a("s_mov_b64 exec, -1")
    stamp(a, cfg, 8)
    a("L_done:")
    a("s_endpgm")

    nv = 256
    head = [f"; @launch grid=(256,1,1) block=(512,1,1) lds={LDS_TOTAL}",
            '.amdgcn_target "amdgcn-amd-amdhsa--gfx950"']
    desc = ['.section .rodata,"a"', kernel_desc(name, nv, max(a.maxs + 1, 16), nv)]
    open(path, "w").write(("\n".join(head) + "\n" + a.text() + "\n".join(desc)).replace(" sc0 sc1", sc))
    print(path, "maxv", a.maxv, "maxs", a.maxs, "lines", len(a.lines))


if __name__ == "__main__":
    build("v3_m1.s", 1)
    build("v3_m1_ts.s", 1, ts=True)
    build("v3_m1_th6.s", 1, TH=6)
    build("v3_m1_th12.s", 1, TH=12)
    build("v3_m1_th16.s", 1, TH=16)
    build("v3_m0.s", 0)
```

```python
import sys
from asmlib import Asm, kernel_begin, kernel_desc
from gen1 import (load_args, srd, red_rows, red64, bf16r, unpack, ln_stats, ln_apply,
                  sX, sK, sV, sWQ, sWO, sBX, sWG, sWU, sWD, sOUT, sDBG, sWS, SCALE, LOG2E, EPS)

NAME = "sequential_preLN__gqa_block_cached__glu_gated_glu__decode"
EPOCH_OFF = 0x0
CNT_OFF = 0x1000
QG_OFF = 0x4000
ML_OFF = 0x10000
ATT_OFF = 0x12000
HID_OFF = 0x22000
H_OFF = 0x23000
PO_OFF = 0x24000
TS_OFF = 0x100000
WS_BYTES = 0x200000

LDS_SC = 131072
LDS_ML = LDS_SC + 16384
LDS_Q = LDS_ML + 256
LDS_QP = LDS_Q + 1024
LDS_TOTAL = LDS_QP + 512
SPIN = 20000
NSTAT = 3
NDYN = (2048 - 256 * NSTAT) // 2
OOB = 0x1000000


class G:
    pass


def stamp(a, cfg, idx):
    if not cfg.ts:
        return
    l = a.uid("L_ts")
    a(f"s_cmp_lg_u32 s3, {cfg.ts_wave}")
    a(f"s_cbranch_scc1 {l}")
    a("s_memrealtime s[88:89]")
    a("s_lshl_b32 s90, s2, 7")
    a(f"s_add_u32 s90, s90, {TS_OFF + idx*8}")
    a("s_waitcnt lgkmcnt(0)")
    a("v_mov_b32 v254, s88")
    a("v_mov_b32 v255, s89")
    a("v_mov_b32 v253, 0")
    a("s_mov_b64 s[92:93], exec")
    a("s_mov_b64 exec, 1")
    a("buffer_store_dwordx2 v[254:255], v253, s[52:55], s90 offen")
    a("s_mov_b64 exec, s[92:93]")
    a(f"{l}:")


def poll(a, groups, tmp, sleep=1):
    n = len(groups)
    L = a.uid("L_poll")
    a(f"s_mov_b32 s56, {(1 << n) - 1}")
    a(f"s_mov_b32 s57, {SPIN}")
    a(f"{L}:")
    for i, (loads, regs) in enumerate(groups):
        if n > 1:
            a(f"s_bitcmp1_b32 s56, {i}")
            a(f"s_cbranch_scc0 {L}_s{i}")
        for ld in loads:
            a(ld)
        if n > 1:
            a(f"{L}_s{i}:")
    a("s_waitcnt vmcnt(0)")
    a("s_mov_b32 s56, 0")
    for i, (loads, regs) in enumerate(groups):
        t = tmp
        rs = list(regs)
        if len(rs) == 1:
            a(f"v_cmp_eq_u32 vcc, -1, {rs[0]}")
        else:
            if len(rs) >= 3:
                a(f"v_max3_u32 {t}, {rs[0]}, {rs[1]}, {rs[2]}")
                rs = rs[3:]
            else:
                a(f"v_max_u32 {t}, {rs[0]}, {rs[1]}")
                rs = rs[2:]
            while len(rs) >= 2:
                a(f"v_max3_u32 {t}, {t}, {rs[0]}, {rs[1]}")
                rs = rs[2:]
            if rs:
                a(f"v_max_u32 {t}, {t}, {rs[0]}")
            a(f"v_cmp_eq_u32 vcc, -1, {t}")
        a("s_cmp_eq_u64 vcc, 0")
        a(f"s_cselect_b32 s58, 0, {1 << i}")
        a("s_or_b32 s56, s56, s58")
    a("s_cmp_eq_u32 s56, 0")
    a(f"s_cbranch_scc1 {L}_done")
    a("s_sub_u32 s57, s57, 1")
    a("s_cmp_eq_u32 s57, 0")
    a(f"s_cbranch_scc1 {L}_done")
    if sleep:
        a(f"s_sleep {sleep}")
    a(f"s_branch {L}")
    a(f"{L}_done:")


def flagcheck(a, t0, t1):
    L = a.uid("L_fc")
    a(f"v_lshlrev_b32 {t0}, 2, v1")
    a(f"s_mov_b32 s57, {SPIN}")
    a("s_mov_b32 s58, 0x01010101")
    a(f"{L}:")
    a(f"buffer_load_dword {t1}, {t0}, s[48:51], 0 offen sc1")
    a("s_waitcnt vmcnt(0)")
    a(f"v_cmp_ne_u32 vcc, s58, {t1}")
    a("s_cmp_eq_u64 vcc, 0")
    a(f"s_cbranch_scc1 {L}_d")
    a("s_sub_u32 s57, s57, 1")
    a("s_cmp_eq_u32 s57, 0")
    a(f"s_cbranch_scc1 {L}_d")
    a("s_sleep 2")
    a(f"s_branch {L}")
    a(f"{L}_d:")


def row16_sum(a, v):
    for r in (8, 4, 2, 1):
        a(f"v_add_f32_dpp {v}, {v}, {v} row_ror:{r} row_mask:0xf bank_mask:0xf")


def build(path, nt=True, ts=False, ts_wave=0, TH=8, trace=False, pol=None, skew=0, vskew=0):
    cfg = G()
    cfg.ts = ts
    cfg.ts_wave = ts_wave
    cfg.trace = trace
    ntf = " nt" if nt else ""
    kvf = ntf if pol is None else pol
    a = Asm()
    name = NAME + "_kernel"
    KV = 8
    KA = 12
    Q = 16
    O = 32
    KO = 64
    T = 80
    S = 96
    P = 104
    MXr = 108
    MX, LS, TA, TB, TC, TD, TE, TK = "v108", "v109", "v110", "v111", "v112", "v113", "v114", "v115"
    A8 = 116
    VS = 124
    W = 188

    kernel_begin(a, name)
    a("s_cmp_ge_u32 s2, 256")
    a("s_cbranch_scc1 L_done")
    load_args(a)
    a("v_lshrrev_b32 v1, 6, v0")
    a("v_readfirstlane_b32 s3, v1")
    a("v_and_b32 v1, 63, v0")
    a("v_lshlrev_b32 v2, 4, v1")
    a("v_lshrrev_b32 v3, 4, v1")
    a("v_lshlrev_b32 v3, 4, v3")
    a("s_lshr_b32 s4, s2, 5")
    a("s_and_b32 s5, s2, 31")
    a("s_lshl_b32 s6, s5, 3")
    a("s_add_u32 s6, s6, s3")
    a("s_lshl_b32 s7, s4, 24")
    a("s_lshl_b32 s8, s6, 13")
    a("s_lshl_b32 s60, s3, 14")
    a(f"s_mul_i32 s67, s4, {skew*8192}")
    a("s_add_u32 s8, s8, s67")
    a("s_and_b32 s9, s5, 7")
    a("s_lshl_b32 s9, s9, 2")
    a("s_lshr_b32 s10, s5, 3")
    a("s_add_u32 s9, s9, s10")
    a("s_lshl_b32 s10, s4, 5")
    a("s_add_u32 s9, s9, s10")
    a("v_lshrrev_b32 v6, 1, v1")
    a("v_bfe_u32 v7, v1, 4, 1")
    a("v_lshlrev_b32 v7, 2, v7")
    a("v_xor_b32 v6, v6, v7")
    a("v_lshlrev_b32 v6, 13, v6")
    a("v_and_b32 v7, 1, v1")
    a("v_lshlrev_b32 v7, 4, v7")
    a("v_add_u32 v6, v6, v7")
    a("s_lshl_b32 s11, s9, 5")
    a("s_lshl_b32 s12, s3, 19")
    a("s_add_u32 s11, s11, s12")
    a("s_lshl_b32 s12, s3, 11")
    a(f"s_add_u32 s12, s12, {LDS_SC}")
    a("s_lshl_b32 s14, s3, 7")
    a("s_and_b32 s62, s3, 1")
    a("s_lshl_b32 s13, s4, 1")
    a("s_add_u32 s62, s62, s13")
    a("s_lshl_b32 s62, s62, 8")
    a(f"s_add_u32 s62, s62, {CNT_OFF}")
    a("s_waitcnt lgkmcnt(0)")
    srd(a, 52, sWS, WS_BYTES)
    srd(a, 68, sX, 1024)
    srd(a, 72, sWQ, 512 * 8192)
    a("s_cmp_lg_u32 s6, 0")
    a("s_cbranch_scc1 L_nocnt")
    a("v_mov_b32 v4, 0")
    a("s_mov_b64 exec, 1")
    a("buffer_store_dword v4, v4, s[52:55], s62 offen sc1")
    a("buffer_store_dword v4, v4, s[52:55], s62 offen offset:256 sc1")
    a("s_mov_b64 exec, -1")
    a("L_nocnt:")
    a(f"buffer_load_dwordx4 v[{O}:{O+3}], v2, s[68:71], 0 offen")
    a(f"buffer_load_dwordx4 v[{O+4}:{O+7}], v3, s[68:71], s14 offen")
    a(f"buffer_load_dwordx4 v[{O+8}:{O+11}], v3, s[68:71], s14 offen offset:64")
    for jj in range(2):
        a(f"s_add_u32 s13, s11, {jj*32*8192}")
        a(f"s_add_u32 m0, s12, {jj*1024}")
        a("buffer_load_dwordx4 v6, s[72:75], s13 offen lds")
    srd(a, 40, sK, 1 << 24, "s7")
    srd(a, 44, sV, 1 << 24, "s7")
    srd(a, 48, sDBG, 256)
    a(f"s_load_dword s15, s[{sWS}:{sWS+1}], {EPOCH_OFF}")

    def v_loads(slot, soff):
        out = []
        for n in range(8):
            grp = []
            if n == 0:
                grp.append(soff)
            if n == 4:
                grp.append("s_add_u32 s10, s10, 4096")
            r = VS + 32 * slot + 4 * n
            grp.append(f"buffer_load_dwordx4 v[{r}:{r+3}], v2, s[44:47], s10 offen offset:{1024*(n%4)}{kvf}")
            out.append(grp)
        return out

    def k_loads(slot, soff):
        out = []
        for n in range(8):
            grp = []
            if n == 0:
                grp.append(soff)
                grp.append(f"s_add_u32 m0, s60, {slot*8192}")
            if n == 4:
                grp.append("s_add_u32 s10, s10, 4096")
                grp.append(f"s_add_u32 m0, s60, {slot*8192+4096}")
            grp.append(f"buffer_load_dwordx4 v{KV + (n & 3)}, s[40:43], s10 offen offset:{1024*(n%4)}{kvf} lds")
            out.append(grp)
        return out

    def emit_groups(groups, throttle=None, already=0):
        n = already
        for grp in groups:
            if throttle is not None and n >= throttle:
                a(f"s_waitcnt vmcnt({throttle-1})")
            for l in grp:
                a(l)
            n += 1

    def stat_off(t):
        if skew:
            return f"s_add_u32 s10, s8, {t*256*8192}\ns_and_b32 s10, s10, 0xffffff"
        return f"s_add_u32 s10, s8, {t*256*8192}"

    H = 8
    emit_groups(v_loads(0, stat_off(0)))
    stamp(a, cfg, 0)
    a("v_lshrrev_b32 v4, 4, v1")
    a("v_and_b32 v5, 15, v1")
    a("v_lshlrev_b32 v6, 2, v4")
    a("v_xor_b32 v6, v6, v5")
    a("v_lshlrev_b32 v7, 8, v4")
    for v in range(4):
        a(f"v_xor_b32 v{KV+v}, {v}, v6")
        a(f"v_lshl_add_u32 v{KV+v}, v{KV+v}, 4, v7")
    a("v_and_b32 v6, 3, v1")
    a("v_lshlrev_b32 v6, 10, v6")
    a("v_bfe_u32 v7, v1, 2, 2")
    a("v_lshl_add_u32 v6, v7, 8, v6")
    a("v_xor_b32 v7, v4, v5")
    a("v_lshl_add_u32 v6, v7, 4, v6")
    a("v_add_u32 v6, s60, v6")
    for i in range(4):
        a(f"v_xor_b32 v{KA+i}, {i << 6}, v6")
    a("s_sub_u32 s10, s5, s4")
    a("s_and_b32 s10, s10, 31")
    a("s_mov_b32 s59, 0")
    a("s_lshl_b32 s11, s4, 2")
    a("s_add_u32 s11, s11, s10")
    a("s_cmp_lt_u32 s10, 4")
    a("s_cselect_b32 s59, 1, s59")
    a("s_cselect_b32 s64, s11, 0")
    a("s_sub_u32 s13, s10, 4")
    a("s_sub_u32 s11, s11, 4")
    a("s_cmp_lt_u32 s13, 4")
    a("s_cselect_b32 s13, s11, 0xffff")
    a("s_cmp_lt_u32 s13, 28")
    a("s_cselect_b32 s59, 2, s59")
    a("s_cselect_b32 s64, s13, s64")
    a("s_lshl_b32 s11, s4, 1")
    a("s_cmp_eq_u32 s10, 8")
    a("s_cselect_b32 s59, 3, s59")
    a("s_cselect_b32 s64, s11, s64")
    a("s_add_u32 s11, s11, 1")
    a("s_cmp_eq_u32 s10, 16")
    a("s_cselect_b32 s59, 3, s59")
    a("s_cselect_b32 s64, s11, s64")
    a("v_bfe_u32 v7, v1, 2, 2")
    a(f"v_lshlrev_b32 v{KO}, 3, v4")
    a(f"v_add_u32 v{KO}, v{KO}, v7")
    a(f"v_and_b32 v{KO+1}, 1, v4")
    a(f"v_lshlrev_b32 v{KO+1}, 2, v{KO+1}")
    a(f"v_xor_b32 v{KO}, v{KO}, v{KO+1}")
    a(f"v_xor_b32 v{KO+1}, 4, v{KO}")
    a("v_and_b32 v7, 3, v1")
    a("v_lshlrev_b32 v7, 3, v7")
    a(f"v_lshlrev_b32 v{KO}, 5, v{KO}")
    a(f"v_lshlrev_b32 v{KO+1}, 5, v{KO+1}")
    a(f"v_add3_u32 v{KO}, v{KO}, v7, s12")
    a(f"v_add3_u32 v{KO+1}, v{KO+1}, v7, s12")
    a("s_lshl_b32 s11, s3, 6")
    a(f"s_add_u32 s11, s11, {LDS_QP}")
    a("v_add_u32 v6, s11, v3")
    a(f"s_waitcnt vmcnt({H+4})")
    xs = [f"v{O+12+j}" for j in range(8)]
    xo = [f"v{T+j}" for j in range(16)]
    for j in range(4):
        unpack(a, xs[2*j], xs[2*j+1], f"v{O+j}")
    ln_stats(a, xs, TA, TB, TC, TD, TE)
    a(f"s_waitcnt vmcnt({H+2})")
    for j in range(8):
        unpack(a, xo[2*j], xo[2*j+1], f"v{O+4+j}")
    for j in range(16):
        ln_apply(a, xo[j], TD, TE, TC, TA, TB)
    for j in range(8):
        a(f"v_cvt_pk_bf16_f32 v{O+4+j}, {xo[2*j]}, {xo[2*j+1]}")
    a(f"s_waitcnt vmcnt({H})")
    stamp(a, cfg, 9)
    for ks in range(2):
        a(f"ds_read_b64_tr_b16 v[{Q+4*ks}:{Q+1+4*ks}], v{KO} offset:{ks*1024}")
        a(f"ds_read_b64_tr_b16 v[{Q+2+4*ks}:{Q+3+4*ks}], v{KO+1} offset:{ks*1024}")
    a("s_waitcnt lgkmcnt(0)")
    a(f"v_mfma_f32_16x16x32_bf16 v[{S}:{S+3}], v[{Q}:{Q+3}], v[{O+4}:{O+7}], 0")
    a(f"v_mfma_f32_16x16x32_bf16 v[{S}:{S+3}], v[{Q+4}:{Q+7}], v[{O+8}:{O+11}], v[{S}:{S+3}]")
    a(f"ds_write_b128 v6, v[{S}:{S+3}]")
    a("s_waitcnt lgkmcnt(0)")
    a("s_barrier")
    a("s_cmp_lg_u32 s3, 0")
    a("s_cbranch_scc1 L_pubq_done")
    stamp(a, cfg, 10)
    a("v_lshlrev_b32 v6, 2, v5")
    a(f"v_add_u32 v7, {LDS_QP}, v6")
    for w in range(8):
        a(f"ds_read_b32 v{T+w}, v7 offset:{w*64}")
    a("s_add_u32 s15, s15, 1")
    a("s_lshl_b32 s11, s9, 6")
    a(f"s_add_u32 s11, s11, {QG_OFF}")
    a(f"v_mov_b32 v{T+9}, s15")
    a("s_waitcnt lgkmcnt(0)")
    for w in range(1, 8):
        a(f"v_add_f32 v{T}, v{T}, v{T+w}")
    a(f"v_mov_b32_dpp v{T+1}, v{T} quad_perm:[1,0,3,2] row_mask:0xf bank_mask:0xf")
    a(f"v_cvt_pk_bf16_f32 v{T+8}, v{T}, v{T+1}")
    a("s_mov_b64 exec, 0x5555")
    a(f"buffer_store_dwordx2 v[{T+8}:{T+9}], v6, s[52:55], s11 offen sc1")
    a("s_mov_b64 exec, -1")
    stamp(a, cfg, 1)
    a("L_pubq_done:")
    a("s_barrier")
    a("s_mov_b32 s9, s64")

    def fill(tag, dma):
        a("s_cmp_eq_u32 s3, 0")
        a(f"s_cbranch_scc1 L_f0_{tag}")
        emit_groups(dma, throttle=TH, already=H)
        a("s_branch L_fill_done")
        a(f"L_f0_{tag}:")
        emit_groups(dma)
        a("s_branch L_fill_done")

    a("s_cmp_eq_u32 s59, 0")
    a("s_cbranch_scc1 L_fillN")
    a("s_cmp_eq_u32 s59, 3")
    a("s_cbranch_scc1 L_fillD")
    a("v_bfe_u32 v4, v1, 1, 2")
    a("v_bfe_u32 v5, v1, 4, 1")
    a("v_xor_b32 v4, v4, v5")
    a("v_lshlrev_b32 v4, 5, v4")
    a("v_and_b32 v5, 1, v1")
    a("v_lshl_add_u32 v4, v5, 4, v4")
    a("v_xor_b32 v5, 64, v4")
    a("v_lshrrev_b32 v6, 3, v1")
    a("s_cmp_eq_u32 s59, 2")
    a("s_cbranch_scc1 L_fillC")
    a("s_lshl_b32 s11, s9, 17")
    srd(a, 68, sWO, 1 << 17, "s11")
    a("v_lshl_add_u32 v4, v6, 10, v4")
    a("v_lshl_add_u32 v5, v6, 10, v5")
    a("s_lshl_b32 s11, s3, 7")
    dma = []
    for n in range(16):
        dma.append([f"s_add_u32 s13, s11, {n*8192}", f"s_add_u32 m0, s60, {n*1024}",
                    f"buffer_load_dwordx4 v{4 + (n & 1)}, s[68:71], s13 offen{ntf} lds"])
    fill("B", dma)
    a("L_fillC:")
    srd(a, 68, sWG, 512 * 3584)
    srd(a, 72, sWU, 512 * 3584)
    a("s_movk_i32 s11, 3584")
    a("v_mul_lo_u32 v6, v6, s11")
    a("v_add_u32 v4, v4, v6")
    a("v_add_u32 v5, v5, v6")
    a("s_lshl_b32 s11, s9, 7")
    a(f"s_mul_i32 s13, s3, {64*3584}")
    a("s_add_u32 s11, s11, s13")
    dma = []
    for n in range(16):
        mat = n >> 3
        dma.append([f"s_add_u32 s13, s11, {(n & 7)*8*3584}", f"s_add_u32 m0, s60, {n*1024}",
                    f"buffer_load_dwordx4 v{4 + (n & 1)}, s[{68+4*mat}:{71+4*mat}], s13 offen{ntf} lds"])
    fill("C", dma)
    a("L_fillD:")
    srd(a, 68, sWD, 1792 * 1024)
    a("v_and_b32 v4, 3, v1")
    a("v_bfe_u32 v5, v1, 5, 1")
    a("v_lshlrev_b32 v5, 1, v5")
    a("v_xor_b32 v4, v4, v5")
    a("v_lshlrev_b32 v4, 4, v4")
    a("v_lshrrev_b32 v5, 2, v1")
    a("v_lshl_add_u32 v4, v5, 10, v4")
    a("s_lshl_b32 s11, s9, 6")
    a(f"s_mul_i32 s13, s3, {224*1024}")
    a("s_add_u32 s11, s11, s13")
    dma = []
    for n in range(14):
        dma.append([f"s_add_u32 s13, s11, {n*16*1024}", f"s_add_u32 m0, s60, {n*1024}",
                    "buffer_load_dwordx4 v4, s[68:71], s13 offen lds"])
    fill("D", dma)
    a("L_fillN:")
    a("L_fill_done:")
    a("s_cmp_lg_u32 s3, 0")
    a("s_cbranch_scc1 L_w17_rest")
    a("s_cmp_lg_u32 s59, 0")
    a("s_cbranch_scc1 L_w0_poll")
    emit_groups(k_loads(0, stat_off(0)) + k_loads(1, stat_off(1)))
    a("L_w0_poll:")
    a("s_lshl_b32 s11, s4, 11")
    a(f"s_add_u32 s11, s11, {QG_OFF}")
    a(f"s_mov_b32 s57, {SPIN}")
    a("L_pq_loop:")
    a(f"buffer_load_dwordx4 v[{T}:{T+3}], v2, s[52:55], s11 offen sc1")
    a(f"buffer_load_dwordx4 v[{T+4}:{T+7}], v2, s[52:55], s11 offen offset:1024 sc1")
    a("s_waitcnt vmcnt(0)")
    for j in (1, 3, 5, 7):
        a(f"v_xor_b32 v{T+j}, s15, v{T+j}")
    a(f"v_or3_b32 v{T+1}, v{T+1}, v{T+3}, v{T+5}")
    a(f"v_or_b32 v{T+1}, v{T+1}, v{T+7}")
    a(f"v_cmp_ne_u32 vcc, 0, v{T+1}")
    a("s_cmp_eq_u64 vcc, 0")
    a("s_cbranch_scc1 L_pq_done")
    a("s_sub_u32 s57, s57, 1")
    a("s_cmp_eq_u32 s57, 0")
    a("s_cbranch_scc1 L_pq_done")
    a("s_sleep 1")
    a("s_branch L_pq_loop")
    a("L_pq_done:")
    stamp(a, cfg, 2)
    a("v_lshlrev_b32 v6, 3, v1")
    a(f"v_add_u32 v6, {LDS_Q}, v6")
    a(f"v_mov_b32 v{T+1}, v{T+2}")
    a(f"v_mov_b32 v{T+5}, v{T+6}")
    a(f"ds_write_b64 v6, v[{T}:{T+1}]")
    a(f"ds_write_b64 v6, v[{T+4}:{T+5}] offset:512")
    for j in range(4):
        a(f"v_mov_b32 v{T+8+j}, -1")
    SEN = f"v[{T+8}:{T+11}]"
    a("v_lshrrev_b32 v6, 5, v1")
    a("v_lshlrev_b32 v6, 14, v6")
    a("v_and_b32 v7, 31, v1")
    a("v_lshl_add_u32 v6, v7, 4, v6")
    a("s_lshl_b32 s11, s4, 16")
    a("s_lshl_b32 s13, s5, 9")
    a("s_add_u32 s11, s11, s13")
    a(f"s_add_u32 s11, s11, {PO_OFF}")
    a(f"buffer_store_dwordx4 {SEN}, v6, s[52:55], s11 offen sc1")
    a("s_add_u32 s11, s11, 0x8000")
    a(f"buffer_store_dwordx4 {SEN}, v6, s[52:55], s11 offen sc1")
    a("v_lshlrev_b32 v6, 8, v1")
    a("s_lshl_b32 s11, s4, 10")
    a("s_lshl_b32 s13, s5, 3")
    a("s_add_u32 s11, s11, s13")
    a(f"s_add_u32 s11, s11, {ML_OFF}")
    a("s_mov_b64 exec, 0xf")
    a(f"buffer_store_dwordx2 v[{T+8}:{T+9}], v6, s[52:55], s11 offen sc1")
    a("s_mov_b64 exec, -1")
    a("s_cmp_eq_u32 s59, 1")
    a("s_cbranch_scc1 L_rst_B")
    a("s_cmp_lg_u32 s59, 2")
    a("s_cbranch_scc1 L_rst_done")
    a("s_lshl_b32 s11, s9, 7")
    a(f"s_add_u32 s11, s11, {HID_OFF}")
    a("s_mov_b64 exec, 0xff")
    a(f"buffer_store_dwordx4 {SEN}, v2, s[52:55], s11 offen sc1")
    a("s_mov_b64 exec, -1")
    a("s_cmp_lg_u32 s9, 0")
    a("s_cbranch_scc1 L_rst_done")
    a(f"s_mov_b32 s11, {H_OFF}")
    a("s_branch L_rst_2k")
    a("L_rst_B:")
    a("s_lshl_b32 s11, s9, 11")
    a(f"s_add_u32 s11, s11, {ATT_OFF}")
    a("L_rst_2k:")
    a(f"buffer_store_dwordx4 {SEN}, v2, s[52:55], s11 offen sc1")
    a(f"buffer_store_dwordx4 {SEN}, v2, s[52:55], s11 offen offset:1024 sc1")
    a("L_rst_done:")
    emit_groups(v_loads(1, stat_off(1)))
    a("s_branch L_role_w")
    a("L_w17_rest:")
    a("s_cmp_lg_u32 s59, 0")
    a("s_cbranch_scc1 L_w17_role")
    emit_groups(k_loads(0, stat_off(0)) + k_loads(1, stat_off(1)) + v_loads(1, stat_off(1)), throttle=TH, already=H)
    a("s_branch L_pre_done")
    a("L_w17_role:")
    emit_groups(v_loads(1, stat_off(1)), throttle=TH, already=TH)
    a("L_role_w:")
    a("s_cmp_eq_u32 s59, 0")
    a("s_cbranch_scc1 L_pre_done")
    a("v_lshrrev_b32 v4, 4, v1")
    a("v_bfe_u32 v5, v1, 2, 2")
    a("v_and_b32 v6, 3, v1")
    a("v_lshlrev_b32 v6, 3, v6")
    a("v_add_u32 v6, s60, v6")
    a("v_lshl_add_u32 v7, v4, 3, v5")
    a("s_cmp_eq_u32 s59, 3")
    a("s_cbranch_scc1 L_trD")
    a("v_lshl_add_u32 v6, v7, 7, v6")
    a("v_lshrrev_b32 v5, 1, v5")
    a("v_and_b32 v4, 1, v4")
    a("v_lshl_add_u32 v5, v4, 1, v5")
    for nb in range(4):
        a(f"v_xor_b32 v{KO+nb}, {nb}, v5")
        a(f"v_lshl_add_u32 v{KO+nb}, v{KO+nb}, 5, v6")
    a("s_waitcnt vmcnt(8)")
    for nb in range(4):
        for ks in range(4):
            r = W + 16 * nb + 4 * ks
            for half in range(2):
                a(f"ds_read_b64_tr_b16 v[{r+2*half}:{r+2*half+1}], v{KO+nb} offset:{ks*4096 + half*512}")
        a("s_waitcnt lgkmcnt(0)")
    a("s_branch L_trdone")
    a("L_trD:")
    a("v_lshl_add_u32 v6, v7, 6, v6")
    a("v_and_b32 v4, 1, v4")
    for nb in range(2):
        a(f"v_xor_b32 v{KO+nb}, {nb}, v4")
        a(f"v_lshl_add_u32 v{KO+nb}, v{KO+nb}, 5, v6")
    a("s_waitcnt vmcnt(8)")
    for nb in range(2):
        for ks in range(7):
            r = W + 28 * nb + 4 * ks
            for half in range(2):
                a(f"ds_read_b64_tr_b16 v[{r+2*half}:{r+2*half+1}], v{KO+nb} offset:{ks*2048 + half*256}")
        a("s_waitcnt lgkmcnt(0)")
    a("L_trdone:")
    emit_groups(k_loads(0, stat_off(0)) + k_loads(1, stat_off(1)))
    a("L_pre_done:")
    a("s_waitcnt lgkmcnt(0)")
    a("s_barrier")
    stamp(a, cfg, 3)
    a("v_and_b32 v6, 3, v1")
    a("v_lshlrev_b32 v6, 8, v6")
    a("v_add_u32 v6, v6, v3")
    a(f"v_add_u32 v6, {LDS_Q}, v6")
    for i in range(4):
        a(f"ds_read_b128 v[{Q+4*i}:{Q+4*i+3}], v6 offset:{64*i}")
    for j in range(32):
        a(f"v_mov_b32 v{O+j}, 0")
    a(f"v_mov_b32 {MX}, 0xff800000")
    a(f"v_mov_b32 {LS}, 0")
    a("v_mov_b32 v4, 0")
    a(f"s_mov_b32 s11, {SCALE:#x}")
    a(f"s_mov_b32 s12, {LOG2E:#x}")
    a("s_mov_b32 s13, 0x05040100")
    a("s_mov_b32 s14, 0x07060302")
    a("s_and_b32 s65, s3, 1")
    a(f"s_add_u32 s65, s65, {256*NSTAT}")

    def ticket():
        a(f"v_mov_b32 {TK}, 1")
        a("s_mov_b64 exec, 1")
        a(f"buffer_atomic_add {TK}, v4, s[52:55], s62 offen sc0")
        a("s_mov_b64 exec, -1")

    def k_read(slot):
        for t16 in range(2):
            base = KO if t16 == 0 else T
            for i in range(4):
                a(f"ds_read_b128 v[{base+4*i}:{base+4*i+3}], v{KA+i} offset:{slot*8192 + t16*4096}")

    def qk_softmax():
        for t16 in range(2):
            base = KO if t16 == 0 else T
            for i in range(4):
                a(f"s_waitcnt lgkmcnt({7 - (4*t16 + i)})")
                c = "0" if i == 0 else f"v[{S+4*t16}:{S+4*t16+3}]"
                a(f"v_mfma_f32_16x16x32_bf16 v[{S+4*t16}:{S+4*t16+3}], v[{base+4*i}:{base+4*i+3}], v[{Q+4*i}:{Q+4*i+3}], {c}")

    def softmax():
        for j in range(4):
            a(f"v_cvt_pk_bf16_f32 {TA}, v{S+2*j}, v{S+2*j+1}")
            unpack(a, TB, TC, TA)
            a(f"v_mul_f32 {TB}, s11, {TB}")
            a(f"v_mul_f32 {TC}, s11, {TC}")
            a(f"v_cvt_pk_bf16_f32 {TA}, {TB}, {TC}")
            unpack(a, f"v{A8+2*j}", f"v{A8+2*j+1}", TA)
        a(f"v_max3_f32 {TB}, v{A8}, v{A8+1}, v{A8+2}")
        a(f"v_max3_f32 {TC}, v{A8+3}, v{A8+4}, v{A8+5}")
        a(f"v_max3_f32 {TB}, {TB}, v{A8+6}, v{A8+7}")
        a(f"v_max3_f32 {TB}, {TB}, {TC}, {MX}")
        red_rows(a, TB, TA, "v_max_f32")
        a(f"v_sub_f32 {TC}, {MX}, {TB}")
        a(f"v_mul_f32 {TD}, s12, {TB}")
        a(f"v_mul_f32 {TC}, s12, {TC}")
        a(f"v_mov_b32 {MX}, {TB}")
        a(f"v_exp_f32 {TC}, {TC}")
        for j in range(8):
            a(f"v_fma_f32 v{A8+j}, v{A8+j}, s12, -{TD}")
        for j in range(8):
            a(f"v_exp_f32 v{A8+j}, v{A8+j}")
        a(f"v_mul_f32 {LS}, {LS}, {TC}")
        for j in range(32):
            a(f"v_mul_f32 v{O+j}, {TC}, v{O+j}")
        for j in range(4):
            a(f"v_cvt_pk_bf16_f32 v{P+j}, v{A8+2*j}, v{A8+2*j+1}")
        for j in range(8):
            a(f"v_add_f32 {LS}, {LS}, v{A8+j}")

    def pv(slot):
        r0 = VS + 32 * slot
        for j in range(4):
            tb = T + 8 * (j % 2)
            for p in range(4):
                lo_src = r0 + 4 * (2 * p) + j
                hi_src = r0 + 4 * (2 * p + 1) + j
                a(f"v_perm_b32 v{tb+p}, v{hi_src}, v{lo_src}, s13")
                a(f"v_perm_b32 v{tb+4+p}, v{hi_src}, v{lo_src}, s14")
            for e2 in range(2):
                e = 2 * j + e2
                a(f"v_mfma_f32_16x16x32_bf16 v[{O+4*e}:{O+4*e+3}], v[{tb+4*e2}:{tb+4*e2+3}], v[{P}:{P+3}], v[{O+4*e}:{O+4*e+3}]")

    a("s_waitcnt vmcnt(0) lgkmcnt(0)")
    a("s_cmp_lg_u32 s3, 0")
    a("s_cbranch_scc1 L_noflag")
    a(f"v_mov_b32 {TA}, 1")
    a("s_mov_b64 exec, 1")
    a(f"buffer_store_byte {TA}, v4, s[48:51], s2 offen sc1")
    a("s_mov_b64 exec, -1")
    a("L_noflag:")
    k_read(0)
    qk_softmax()
    emit_groups(k_loads(0, stat_off(2)))
    ticket()
    softmax()
    pv(0)
    emit_groups(v_loads(0, stat_off(2)))
    k_read(1)
    qk_softmax()
    softmax()
    pv(1)
    a("s_movk_i32 s66, 400")
    a("L_loop:")
    for s in range(2):
        a("s_waitcnt vmcnt(8)")
        if cfg.trace:
            a("s_memrealtime s[88:89]")
            a(f"v_readfirstlane_b32 s61, {TK}")
            a("s_min_u32 s61, s61, 1023")
            a(f"s_sub_u32 s90, s62, {CNT_OFF}")
            a("s_lshl_b32 s90, s90, 5")
            a("s_lshl_b32 s61, s61, 3")
            a("s_add_u32 s90, s90, s61")
            a(f"s_add_u32 s90, s90, {TS_OFF + 0x10000}")
            a("s_waitcnt lgkmcnt(0)")
            a("v_mov_b32 v254, s88")
            a("v_mov_b32 v255, s89")
            a("s_mov_b64 exec, 1")
            a("buffer_store_dwordx2 v[254:255], v4, s[52:55], s90 offen")
            a("s_mov_b64 exec, -1")
        k_read(s)
        a(f"v_readfirstlane_b32 s61, {TK}")
        a(f"s_cmp_lt_u32 s61, {NDYN}")
        a("s_cselect_b32 s63, 1, 0")
        a("s_lshl_b32 s61, s61, 1")
        a("s_add_u32 s61, s61, s65")
        a("s_lshl_b32 s61, s61, 13")
        if skew:
            a("s_add_u32 s61, s61, s67")
            a("s_and_b32 s61, s61, 0xffffff")
        a("s_cmp_eq_u32 s63, 1")
        a(f"s_cselect_b32 s61, s61, {OOB}")
        emit_groups(k_loads(s ^ 1, "s_mov_b32 s10, s61"))
        ticket()
        qk_softmax()
        softmax()
        a(f"s_waitcnt vmcnt({10 if cfg.trace else 9})")
        emit_groups(v_loads(s ^ 1, "s_mov_b32 s10, s61"))
        pv(s)
        a("s_cmp_eq_u32 s63, 0")
        a("s_cbranch_scc1 L_loop_done")
    a("s_sub_u32 s66, s66, 1")
    a("s_cmp_lg_u32 s66, 0")
    a("s_cbranch_scc1 L_loop")
    a("L_loop_done:")
    red_rows(a, LS, TA, "v_add_f32")
    stamp(a, cfg, 4)
    a("v_and_b32 v5, 3, v1")
    a("v_lshlrev_b32 v6, 9, v5")
    a("v_lshl_add_u32 v6, v3, 3, v6")
    a("s_lshl_b32 s10, s3, 11")
    a(f"s_add_u32 s10, s10, {LDS_SC}")
    a("v_add_u32 v6, s10, v6")
    for r in range(4):
        for e in range(8):
            a(f"v_mov_b32 v{KO+8*r+e}, v{O+4*e+r}")
    for r in range(4):
        a(f"ds_write_b128 v6, v[{KO+8*r}:{KO+8*r+3}] offset:{32*r}")
        a(f"ds_write_b128 v6, v[{KO+8*r+4}:{KO+8*r+7}] offset:{32*r+16}")
    a("v_lshlrev_b32 v5, 3, v5")
    a("s_lshl_b32 s10, s3, 5")
    a(f"s_add_u32 s10, s10, {LDS_ML}")
    a("v_add_u32 v5, s10, v5")
    a(f"ds_write_b64 v5, v[{MXr}:{MXr+1}]")
    a("s_waitcnt vmcnt(0) lgkmcnt(0)")
    a("s_barrier")
    a("s_cmp_ge_u32 s3, 2")
    a("s_cbranch_scc1 L_pub_done")
    a("v_lshrrev_b32 v4, 5, v0")
    a("v_lshlrev_b32 v5, 3, v4")
    a(f"v_add_u32 v5, {LDS_ML}, v5")
    a("v_lshlrev_b32 v6, 4, v0")
    a(f"v_add_u32 v6, {LDS_SC}, v6")
    for w in range(8):
        a(f"ds_read_b64 v[{8+2*w}:{9+2*w}], v5 offset:{32*w}")
    for w in range(7):
        a(f"ds_read_b128 v[{24+4*w}:{27+4*w}], v6 offset:{2048*w}")
    a("s_waitcnt lgkmcnt(7)")
    a(f"ds_read_b128 v[52:55], v6 offset:{2048*7}")
    a("v_max3_f32 v56, v8, v10, v12")
    a("v_max3_f32 v56, v56, v14, v16")
    a("v_max3_f32 v56, v56, v18, v20")
    a("v_max_f32 v56, v56, v22")
    for w in range(8):
        a(f"v_sub_f32 v{8+2*w}, v{8+2*w}, v56")
    for w in range(8):
        a(f"v_mul_f32 v{8+2*w}, s12, v{8+2*w}")
    for w in range(8):
        a(f"v_exp_f32 v{8+2*w}, v{8+2*w}")
    a("s_lshl_b32 s10, s4, 7")
    a("s_add_u32 s10, s10, s5")
    a("v_lshlrev_b32 v6, 5, v4")
    a("v_add_u32 v6, s10, v6")
    a("v_lshlrev_b32 v7, 9, v6")
    a("v_and_b32 v5, 31, v0")
    a("v_lshl_add_u32 v7, v5, 4, v7")
    a("v_lshlrev_b32 v6, 3, v6")
    a(f"s_mov_b32 s10, {PO_OFF}")
    a(f"s_mov_b32 s11, {ML_OFF}")
    a("s_waitcnt lgkmcnt(0)")
    for j in range(4):
        a(f"v_mul_f32 v{60+j}, v8, v{24+j}")
    for w in range(1, 8):
        for j in range(4):
            a(f"v_fmac_f32 v{60+j}, v{8+2*w}, v{24+4*w+j}")
    a("buffer_store_dwordx4 v[60:63], v7, s[52:55], s10 offen sc1")
    a("v_mul_f32 v57, v8, v9")
    for w in range(1, 8):
        a(f"v_fmac_f32 v57, v{8+2*w}, v{9+2*w}")
    a("s_mov_b32 exec_lo, 1")
    a("s_mov_b32 exec_hi, 1")
    a("buffer_store_dwordx2 v[56:57], v6, s[52:55], s11 offen sc1")
    a("s_mov_b64 exec, -1")
    a("L_pub_done:")
    stamp(a, cfg, 5)
    a("s_cmp_eq_u32 s59, 0")
    a("s_cbranch_scc1 L_done")
    a("s_cmp_eq_u32 s59, 2")
    a("s_cbranch_scc1 L_stC")
    a("s_cmp_eq_u32 s59, 3")
    a("s_cbranch_scc1 L_stD")

    a("v_lshrrev_b32 v4, 5, v1")
    a("v_lshlrev_b32 v4, 9, v4")
    a("v_and_b32 v5, 31, v1")
    a("v_lshl_add_u32 v4, v5, 4, v4")
    a("s_lshl_b32 s10, s9, 14")
    a("s_lshl_b32 s11, s3, 11")
    a("s_add_u32 s10, s10, s11")
    a(f"s_add_u32 s10, s10, {PO_OFF}")
    a("v_lshlrev_b32 v6, 3, v5")
    a("s_lshl_b32 s11, s9, 8")
    a(f"s_add_u32 s11, s11, {ML_OFF}")
    a("v_lshrrev_b32 v72, 5, v1")
    a("s_lshl_b32 s13, s3, 2")
    a("v_add_u32 v72, s13, v72")
    a("v_lshlrev_b32 v72, 2, v72")
    a("s_lshl_b32 s13, s3, 9")
    a("v_lshlrev_b32 v73, 4, v5")
    a("v_add_u32 v73, s13, v73")
    a("v_lshlrev_b32 v74, 3, v1")
    a("s_lshl_b32 s13, s3, 8")
    a("s_add_u32 s13, s13, 4096")
    a("v_lshlrev_b32 v75, 2, v1")
    a("v_add_u32 v75, s13, v75")
    a("v_add_u32 v76, s13, v3")
    a("s_lshl_b32 s13, s3, 8")
    a("s_lshl_b32 s14, s9, 11")
    a("s_add_u32 s14, s14, s13")
    a(f"s_add_u32 s14, s14, {ATT_OFF}")
    a("v_and_b32 v7, 15, v1")
    a("v_lshl_add_u32 v77, v7, 6, v3")
    for nb in range(1, 4):
        a(f"v_cmp_eq_u32 s[{76+2*nb}:{77+2*nb}], {nb}, v7")
    flagcheck(a, "v78", "v79")
    stamp(a, cfg, 6)
    poll(a, [
        (["buffer_load_dwordx4 v[8:11], v4, s[52:55], s10 offen sc1"], ["v8", "v9", "v10", "v11"]),
        (["buffer_load_dwordx4 v[12:15], v4, s[52:55], s10 offen offset:1024 sc1"], ["v12", "v13", "v14", "v15"]),
        (["buffer_load_dwordx2 v[16:17], v6, s[52:55], s11 offen sc1"], ["v16", "v17"]),
    ], "v78")
    stamp(a, cfg, 7)
    a("v_mov_b32 v18, v16")
    for r in (8, 4, 2, 1):
        a(f"v_max_f32_dpp v18, v18, v18 row_ror:{r} row_mask:0xf bank_mask:0xf")
    a("v_mov_b32 v19, v18")
    a("v_permlane16_swap_b32 v19, v18")
    a("v_max_f32 v18, v19, v18")
    a("v_sub_f32 v16, v16, v18")
    a("v_mul_f32 v16, s12, v16")
    a("v_exp_f32 v16, v16")
    a("v_mul_f32 v17, v16, v17")
    a("ds_bpermute_b32 v20, v72, v16")
    a("ds_bpermute_b32 v21, v72, v16 offset:8")
    row16_sum(a, "v17")
    a("v_mov_b32 v19, v17")
    a("v_permlane16_swap_b32 v19, v17")
    a("v_add_f32 v17, v19, v17")
    a("v_rcp_f32 v19, v17")
    a("s_waitcnt lgkmcnt(0)")
    for j in range(4):
        a(f"v_mul_f32 v{8+j}, v20, v{8+j}")
    for j in range(4):
        a(f"v_fmac_f32 v{8+j}, v21, v{12+j}")
    for j in range(4):
        a(f"v_mov_b32 v{24+j}, v{8+j}")
    for j in range(4):
        a(f"v_permlane32_swap_b32 v{24+j}, v{8+j}")
    for j in range(4):
        a(f"v_add_f32 v{8+j}, v{24+j}, v{8+j}")
    a("ds_write_b128 v73, v[8:11]")
    a("s_waitcnt lgkmcnt(0)")
    a("s_barrier")
    for w in range(8):
        a(f"ds_read_b64 v[{24+2*w}:{25+2*w}], v74 offset:{512*w}")
    a("s_waitcnt lgkmcnt(0)")
    for w in range(1, 8):
        a(f"v_add_f32 v24, v24, v{24+2*w}")
        a(f"v_add_f32 v25, v25, v{25+2*w}")
    for j in range(2):
        a(f"v_mul_f32 v{26+j}, v{24+j}, v19")
    for j in range(2):
        a(f"v_fma_f32 v{28+j}, -v{26+j}, v17, v{24+j}")
    for j in range(2):
        a(f"v_fma_f32 v{24+j}, v{28+j}, v19, v{26+j}")
    a("v_cvt_pk_bf16_f32 v24, v24, v25")
    a("ds_write_b32 v75, v24")
    a("s_waitcnt lgkmcnt(0)")
    for ks in range(4):
        a(f"ds_read_b128 v[{32+4*ks}:{35+4*ks}], v76 offset:{64*ks}")
    for ks in range(4):
        a(f"s_waitcnt lgkmcnt({3-ks})")
        for nb in range(4):
            r = W + 16 * nb + 4 * ks
            c = "0" if ks == 0 else f"v[{48+4*nb}:{51+4*nb}]"
            a(f"v_mfma_f32_16x16x32_bf16 v[{48+4*nb}:{51+4*nb}], v[{r}:{r+3}], v[{32+4*ks}:{35+4*ks}], {c}")
    for nb in range(1, 4):
        for j in range(4):
            a(f"v_cndmask_b32 v{48+j}, v{48+j}, v{48+4*nb+j}, s[{76+2*nb}:{77+2*nb}]")
    a("s_mov_b32 exec_lo, 0x000f000f")
    a("s_mov_b32 exec_hi, 0x000f000f")
    a("buffer_store_dwordx4 v[48:51], v77, s[52:55], s14 offen sc1")
    a("s_mov_b64 exec, -1")
    stamp(a, cfg, 8)
    a("s_branch L_done")

    a("L_stC:")
    srd(a, 72, sX, 1024)
    a("v_and_b32 v5, 15, v1")
    a("v_lshlrev_b32 v6, 3, v5")
    a("s_lshl_b32 s10, s3, 7")
    a("buffer_load_dwordx2 v[64:65], v6, s[72:75], s10 offen")
    a("v_lshlrev_b32 v6, 7, v3")
    a("v_lshl_add_u32 v6, v5, 4, v6")
    a("s_lshl_b32 s10, s3, 8")
    a(f"s_add_u32 s10, s10, {ATT_OFF}")
    for i in range(8):
        a(f"s_add_u32 s{76+i}, s10, {i*8192}")
    a("s_lshl_b32 s13, s3, 3")
    a("v_mov_b32 v70, s13")
    a("v_mov_b32 v71, 0")
    a("s_lshl_b32 s13, s3, 7")
    a("s_add_u32 s13, s13, 1024")
    a("v_lshlrev_b32 v72, 3, v5")
    a("v_add_u32 v72, s13, v72")
    a("v_add_u32 v73, s13, v3")
    a("s_lshl_b32 s13, s3, 9")
    a("s_add_u32 s13, s13, 4096")
    a("v_add_u32 v74, s13, v3")
    a("v_lshlrev_b32 v75, 2, v1")
    a("v_add_u32 v75, 4096, v75")
    a("v_lshlrev_b32 v76, 1, v1")
    a("s_lshl_b32 s14, s9, 7")
    a(f"s_add_u32 s14, s14, {HID_OFF}")
    a("v_lshlrev_b32 v77, 4, v5")
    a("s_lshl_b32 s11, s3, 8")
    a(f"s_add_u32 s11, s11, {H_OFF}")
    flagcheck(a, "v78", "v79")
    for j in range(2):
        unpack(a, f"v{66+2*j}", f"v{67+2*j}", f"v{64+j}")
    stamp(a, cfg, 6)
    poll(a, [([f"buffer_load_dwordx4 v[{16+4*i}:{19+4*i}], v6, s[52:55], s{76+i} offen sc1"],
              [f"v{16+4*i+j}" for j in range(4)]) for i in range(8)], "v78")
    stamp(a, cfg, 7)
    for i in (0, 2, 4, 6):
        for j in range(4):
            a(f"v_add_f32 v{16+4*i+j}, v{16+4*i+j}, v{20+4*i+j}")
    for i in (0, 4):
        for j in range(4):
            a(f"v_add_f32 v{16+4*i+j}, v{16+4*i+j}, v{24+4*i+j}")
    for j in range(4):
        a(f"v_add_f32 v{16+j}, v{16+j}, v{32+j}")
    for sw in ("16", "32"):
        for j in range(4):
            a(f"v_mov_b32 v{20+j}, v{16+j}")
        for j in range(4):
            a(f"v_permlane{sw}_swap_b32 v{20+j}, v{16+j}")
        for j in range(4):
            a(f"v_add_f32 v{16+j}, v{20+j}, v{16+j}")
    a("v_cvt_pk_bf16_f32 v20, v16, v17")
    a("v_cvt_pk_bf16_f32 v21, v18, v19")
    unpack(a, "v16", "v17", "v20")
    unpack(a, "v18", "v19", "v21")
    for j in range(4):
        a(f"v_add_f32 v{16+j}, v{16+j}, v{66+j}")
    a("v_cvt_pk_bf16_f32 v20, v16, v17")
    a("v_cvt_pk_bf16_f32 v21, v18, v19")
    unpack(a, "v16", "v17", "v20")
    unpack(a, "v18", "v19", "v21")
    a("v_add_f32 v24, v16, v17")
    a("v_add_f32 v25, v18, v19")
    a("v_add_f32 v24, v24, v25")
    row16_sum(a, "v24")
    a("v_mul_f32 v26, 0x3c800000, v24")
    for j in range(4):
        a(f"v_sub_f32 v{28+j}, v{16+j}, v26")
    a("v_mul_f32 v25, v28, v28")
    for j in range(1, 4):
        a(f"v_fmac_f32 v25, v{28+j}, v{28+j}")
    row16_sum(a, "v25")
    a("ds_write_b64 v70, v[24:25]")
    a("s_cmp_lg_u32 s9, 0")
    a("s_cbranch_scc1 L_C_noh")
    a("s_mov_b64 exec, 0xffff")
    a("buffer_store_dwordx4 v[16:19], v77, s[52:55], s11 offen sc1")
    a("s_mov_b64 exec, -1")
    a("L_C_noh:")
    a("s_waitcnt lgkmcnt(0)")
    a("s_barrier")
    for i in range(4):
        a(f"ds_read_b128 v[{32+4*i}:{35+4*i}], v71 offset:{16*i}")
    a("s_waitcnt lgkmcnt(0)")
    a("v_add_f32 v24, v32, v34")
    a("v_add_f32 v25, v36, v38")
    a("v_add_f32 v26, v40, v42")
    a("v_add_f32 v27, v44, v46")
    a("v_add_f32 v24, v24, v25")
    a("v_add_f32 v26, v26, v27")
    a("v_add_f32 v24, v24, v26")
    a("v_mul_f32 v24, 0x3b000000, v24")
    a("v_add_f32 v25, v33, v35")
    a("v_add_f32 v26, v37, v39")
    a("v_add_f32 v27, v41, v43")
    a("v_add_f32 v28, v45, v47")
    a("s_mov_b32 s10, 0x3c800000")
    for w in range(8):
        a(f"v_fma_f32 v{32+2*w}, v{32+2*w}, s10, -v24")
    a("v_add_f32 v25, v25, v26")
    a("v_add_f32 v27, v27, v28")
    a("v_mul_f32 v26, v32, v32")
    a("v_mul_f32 v28, v34, v34")
    for w in (2, 4, 6):
        a(f"v_fmac_f32 v26, v{32+2*w}, v{32+2*w}")
        a(f"v_fmac_f32 v28, v{34+2*w}, v{34+2*w}")
    a("v_add_f32 v25, v25, v27")
    a("v_add_f32 v26, v26, v28")
    a("v_fmac_f32 v25, 0x42800000, v26")
    a("v_mul_f32 v25, 0x3b000000, v25")
    a("v_cvt_pk_bf16_f32 v26, v24, v25")
    unpack(a, "v24", "v25", "v26")
    a(f"v_add_f32 v25, {EPS:#x}, v25")
    for j in range(4):
        a(f"v_sub_f32 v{16+j}, v{16+j}, v24")
    bf16r(a, "v25", "v25")
    a("v_sqrt_f32 v25, v25")
    a("v_cvt_pk_bf16_f32 v20, v16, v17")
    a("v_cvt_pk_bf16_f32 v21, v18, v19")
    bf16r(a, "v25", "v25")
    a("v_rcp_f32 v26, v25")
    unpack(a, "v16", "v17", "v20")
    unpack(a, "v18", "v19", "v21")
    for j in range(4):
        a(f"v_mul_f32 v{28+j}, v{16+j}, v26")
    for j in range(4):
        a(f"v_fma_f32 v{20+j}, -v{28+j}, v25, v{16+j}")
    for j in range(4):
        a(f"v_fma_f32 v{16+j}, v{20+j}, v26, v{28+j}")
    a("v_cvt_pk_bf16_f32 v20, v16, v17")
    a("v_cvt_pk_bf16_f32 v21, v18, v19")
    a("ds_write_b64 v72, v[20:21]")
    a("s_waitcnt lgkmcnt(0)")
    a("ds_read_b128 v[24:27], v73")
    a("ds_read_b128 v[28:31], v73 offset:64")
    for ks in range(2):
        a(f"s_waitcnt lgkmcnt({1-ks})")
        for blk in range(8):
            mat, nb = divmod(blk, 4)
            r = W + 16 * nb + 4 * (2 * mat + ks)
            c = "0" if ks == 0 else f"v[{32+4*blk}:{35+4*blk}]"
            a(f"v_mfma_f32_16x16x32_bf16 v[{32+4*blk}:{35+4*blk}], v[{r}:{r+3}], v[{24+4*ks}:{27+4*ks}], {c}")
    a("s_mov_b32 exec_lo, 0x00010001")
    a("s_mov_b32 exec_hi, 0x00010001")
    for blk in range(8):
        a(f"ds_write_b128 v74, v[{32+4*blk}:{35+4*blk}] offset:{64*blk}")
    a("s_mov_b64 exec, -1")
    a("s_waitcnt lgkmcnt(0)")
    a("s_barrier")
    a("s_cmp_lg_u32 s3, 0")
    a("s_cbranch_scc1 L_done")
    for w in range(8):
        a(f"ds_read2_b32 v[{16+2*w}:{17+2*w}], v75 offset0:{(128*w) % 256} offset1:{(128*w) % 256 + 64}")
        if w % 2 == 1 and w < 7:
            a("v_add_u32 v75, 1024, v75")
    a("s_waitcnt lgkmcnt(0)")
    for w in range(1, 8):
        a(f"v_add_f32 v16, v16, v{16+2*w}")
        a(f"v_add_f32 v17, v17, v{17+2*w}")
    a("v_cvt_pk_bf16_f32 v18, v16, v17")
    unpack(a, "v16", "v17", "v18")
    a("v_mul_f32 v18, s12, v16")
    a("v_exp_f32 v18, -v18")
    a("v_add_f32 v18, 1.0, v18")
    a("v_rcp_f32 v19, v18")
    a("v_fma_f32 v18, -v18, v19, 1.0")
    a("v_fma_f32 v19, v18, v19, v19")
    bf16r(a, "v19", "v19")
    a("v_mul_f32 v16, v19, v17")
    a("v_mov_b32_dpp v17, v16 quad_perm:[1,0,3,2] row_mask:0xf bank_mask:0xf")
    a("v_cvt_pk_bf16_f32 v16, v16, v17")
    a("s_mov_b32 exec_lo, 0x55555555")
    a("s_mov_b32 exec_hi, 0x55555555")
    a("buffer_store_dword v16, v76, s[52:55], s14 offen sc1")
    a("s_mov_b64 exec, -1")
    stamp(a, cfg, 8)
    a("s_branch L_done")

    a("L_stD:")
    srd(a, 72, sOUT, 1024)
    a("s_mul_i32 s10, s3, 448")
    a(f"s_add_u32 s10, s10, {HID_OFF}")
    a("v_and_b32 v5, 31, v1")
    a("v_lshlrev_b32 v5, 2, v5")
    a("s_lshl_b32 s11, s9, 7")
    a(f"s_add_u32 s11, s11, {H_OFF}")
    a("s_lshl_b32 s13, s3, 7")
    a("v_add_u32 v6, s13, v3")
    a("v_lshrrev_b32 v7, 1, v5")
    a("s_lshl_b32 s14, s9, 6")
    flagcheck(a, "v78", "v79")
    stamp(a, cfg, 6)
    B = 32
    poll(a, [([f"buffer_load_dwordx4 v[{B+4*ks}:{B+4*ks+3}], v3, s[52:55], s10 offen offset:{64*ks} sc1" for ks in range(7)]
              + ["buffer_load_dword v20, v5, s[52:55], s11 offen sc1"],
              [f"v{B+j}" for j in range(28)] + ["v20"])], "v78")
    stamp(a, cfg, 7)
    for ks in range(7):
        for nb in range(2):
            r = W + 28 * nb + 4 * ks
            c = "0" if ks == 0 else f"v[{8+4*nb}:{11+4*nb}]"
            a(f"v_mfma_f32_16x16x32_bf16 v[{8+4*nb}:{11+4*nb}], v[{r}:{r+3}], v[{B+4*ks}:{B+4*ks+3}], {c}")
    a("ds_write_b128 v6, v[8:11]")
    a("ds_write_b128 v6, v[12:15] offset:64")
    a("s_waitcnt lgkmcnt(0)")
    a("s_barrier")
    a("s_cmp_lg_u32 s3, 0")
    a("s_cbranch_scc1 L_done")
    for w in range(8):
        a(f"ds_read_b32 v{8+w}, v5 offset:{128*w}")
    a("s_waitcnt lgkmcnt(0)")
    for w in (0, 2, 4, 6):
        a(f"v_add_f32 v{8+w}, v{8+w}, v{9+w}")
    a("v_add_f32 v8, v8, v10")
    a("v_add_f32 v12, v12, v14")
    a("v_add_f32 v8, v8, v12")
    bf16r(a, "v8", "v8")
    a("v_add_f32 v8, v8, v20")
    a("v_mov_b32_dpp v9, v8 quad_perm:[1,0,3,2] row_mask:0xf bank_mask:0xf")
    a("v_cvt_pk_bf16_f32 v8, v8, v9")
    a("s_mov_b64 exec, 0x55555555")
    a("buffer_store_dword v8, v7, s[72:75], s14 offen")
    a("s_cmp_lg_u32 s9, 0")
    a("s_cbranch_scc1 L_noepoch")
    a("s_mov_b64 exec, 1")
    a("v_mov_b32 v12, s15")
    a("v_mov_b32 v13, 0")
    a(f"s_mov_b32 s10, {EPOCH_OFF}")
    a("buffer_store_dword v12, v13, s[52:55], s10 offen")
    a("L_noepoch:")
    a("s_mov_b64 exec, -1")
    stamp(a, cfg, 8)
    a("L_done:")
    a("s_endpgm")

    nv = 256
    head = [f"; @launch grid=(256,1,1) block=(512,1,1) lds={LDS_TOTAL}",
            '.amdgcn_target "amdgcn-amd-amdhsa--gfx950"']
    desc = ['.section .rodata,"a"', kernel_desc(name, nv, max(a.maxs + 1, 16), nv)]
    open(path, "w").write("\n".join(head) + "\n" + a.text() + "\n".join(desc))
    print(path, "maxv", a.maxv, "maxs", a.maxs, "lines", len(a.lines))


if __name__ == "__main__":
    build("v5.s")
    build("v5_ts.s", ts=True)
    build("v5_tr.s", ts=True, trace=True)
    build("v5_sk37.s", skew=37)
    build("v5_sk261.s", skew=261)
    build("v5_sk1.s", skew=1)
    build("v5_p_ntsc1.s", pol=" sc1 nt")
    build("v5_p_sc0nt.s", pol=" sc0 nt")
    build("v5_p_all.s", pol=" sc0 sc1 nt")
    build("v5_p_sc1.s", pol=" sc1")
    build("v5_p_none.s", pol="")
```

```python
import sys
from asmlib import Asm, kernel_begin, kernel_desc
from gen1 import (load_args, srd, red_rows, red64, bf16r, unpack, ln_stats, ln_apply,
                  sX, sK, sV, sWQ, sWO, sBX, sWG, sWU, sWD, sOUT, sDBG, sWS, SCALE, LOG2E, EPS)

NAME = "sequential_preLN__gqa_block_cached__glu_gated_glu__decode"
EPOCH_OFF = 0x0
CNT_OFF = 0x1000
QG_OFF = 0x4000
ML_OFF = 0x10000
ATT_OFF = 0x12000
HID_OFF = 0x22000
H_OFF = 0x23000
PO_OFF = 0x24000
TS_OFF = 0x100000
WS_BYTES = 0x200000

LDS_SC = 131072
LDS_ML = LDS_SC + 16384
LDS_Q = LDS_ML + 256
LDS_QP = LDS_Q + 1024
LDS_TOTAL = LDS_QP + 512
SPIN = 20000
NSTAT = 3
NDYN = (2048 - 256 * NSTAT) // 2
OOB = 0x1000000


class G:
    pass


def stamp(a, cfg, idx):
    if not cfg.ts:
        return
    l = a.uid("L_ts")
    a(f"s_cmp_lg_u32 s3, {cfg.ts_wave}")
    a(f"s_cbranch_scc1 {l}")
    a("s_memrealtime s[88:89]")
    a("s_lshl_b32 s90, s2, 7")
    a(f"s_add_u32 s90, s90, {TS_OFF + idx*8}")
    a("s_waitcnt lgkmcnt(0)")
    a("v_mov_b32 v254, s88")
    a("v_mov_b32 v255, s89")
    a("v_mov_b32 v253, 0")
    a("s_mov_b64 s[92:93], exec")
    a("s_mov_b64 exec, 1")
    a("buffer_store_dwordx2 v[254:255], v253, s[52:55], s90 offen")
    a("s_mov_b64 exec, s[92:93]")
    a(f"{l}:")


def poll(a, groups, tmp, sleep=1):
    n = len(groups)
    L = a.uid("L_poll")
    a(f"s_mov_b32 s56, {(1 << n) - 1}")
    a(f"s_mov_b32 s57, {SPIN}")
    a(f"{L}:")
    for i, (loads, regs) in enumerate(groups):
        if n > 1:
            a(f"s_bitcmp1_b32 s56, {i}")
            a(f"s_cbranch_scc0 {L}_s{i}")
        for ld in loads:
            a(ld)
        if n > 1:
            a(f"{L}_s{i}:")
    a("s_waitcnt vmcnt(0)")
    a("s_mov_b32 s56, 0")
    for i, (loads, regs) in enumerate(groups):
        t = tmp
        rs = list(regs)
        if len(rs) == 1:
            a(f"v_cmp_eq_u32 vcc, -1, {rs[0]}")
        else:
            if len(rs) >= 3:
                a(f"v_max3_u32 {t}, {rs[0]}, {rs[1]}, {rs[2]}")
                rs = rs[3:]
            else:
                a(f"v_max_u32 {t}, {rs[0]}, {rs[1]}")
                rs = rs[2:]
            while len(rs) >= 2:
                a(f"v_max3_u32 {t}, {t}, {rs[0]}, {rs[1]}")
                rs = rs[2:]
            if rs:
                a(f"v_max_u32 {t}, {t}, {rs[0]}")
            a(f"v_cmp_eq_u32 vcc, -1, {t}")
        a("s_cmp_eq_u64 vcc, 0")
        a(f"s_cselect_b32 s58, 0, {1 << i}")
        a("s_or_b32 s56, s56, s58")
    a("s_cmp_eq_u32 s56, 0")
    a(f"s_cbranch_scc1 {L}_done")
    a("s_sub_u32 s57, s57, 1")
    a("s_cmp_eq_u32 s57, 0")
    a(f"s_cbranch_scc1 {L}_done")
    if sleep:
        a(f"s_sleep {sleep}")
    a(f"s_branch {L}")
    a(f"{L}_done:")


def flagcheck(a, t0, t1):
    L = a.uid("L_fc")
    a(f"v_lshlrev_b32 {t0}, 2, v1")
    a(f"s_mov_b32 s57, {SPIN}")
    a("s_mov_b32 s58, 0x01010101")
    a(f"{L}:")
    a(f"buffer_load_dword {t1}, {t0}, s[48:51], 0 offen sc1")
    a("s_waitcnt vmcnt(0)")
    a(f"v_cmp_ne_u32 vcc, s58, {t1}")
    a("s_cmp_eq_u64 vcc, 0")
    a(f"s_cbranch_scc1 {L}_d")
    a("s_sub_u32 s57, s57, 1")
    a("s_cmp_eq_u32 s57, 0")
    a(f"s_cbranch_scc1 {L}_d")
    a("s_sleep 2")
    a(f"s_branch {L}")
    a(f"{L}_d:")


def row16_sum(a, v):
    for r in (8, 4, 2, 1):
        a(f"v_add_f32_dpp {v}, {v}, {v} row_ror:{r} row_mask:0xf bank_mask:0xf")


def build(path, nt=True, ts=False, ts_wave=0, TH=8, trace=False, pol=None, skew=0, vskew=0, kpol=None, vpol=None):
    cfg = G()
    cfg.ts = ts
    cfg.ts_wave = ts_wave
    cfg.trace = trace
    ntf = " nt" if nt else ""
    kvf = ntf if pol is None else pol
    kf = kvf if kpol is None else kpol
    vf = kvf if vpol is None else vpol
    a = Asm()
    name = NAME + "_kernel"
    KV = 8
    KA = 12
    Q = 16
    O = 32
    KO = 64
    T = 80
    S = 96
    P = 104
    MXr = 108
    MX, LS, TA, TB, TC, TD, TE, TK = "v108", "v109", "v110", "v111", "v112", "v113", "v114", "v115"
    A8 = 116
    VS = 124
    W = 188

    kernel_begin(a, name)
    a("s_cmp_ge_u32 s2, 256")
    a("s_cbranch_scc1 L_done")
    load_args(a)
    a("v_lshrrev_b32 v1, 6, v0")
    a("v_readfirstlane_b32 s3, v1")
    a("v_and_b32 v1, 63, v0")
    a("v_lshlrev_b32 v2, 4, v1")
    a("v_lshrrev_b32 v3, 4, v1")
    a("v_lshlrev_b32 v3, 4, v3")
    a("s_lshr_b32 s4, s2, 5")
    a("s_and_b32 s5, s2, 31")
    a("s_lshl_b32 s6, s5, 3")
    a("s_add_u32 s6, s6, s3")
    a("s_lshl_b32 s7, s4, 24")
    a("s_lshl_b32 s8, s6, 13")
    a("s_lshl_b32 s60, s3, 14")
    a(f"s_mul_i32 s67, s4, {skew*8192}")
    a("s_add_u32 s8, s8, s67")
    a("s_and_b32 s9, s5, 7")
    a("s_lshl_b32 s9, s9, 2")
    a("s_lshr_b32 s10, s5, 3")
    a("s_add_u32 s9, s9, s10")
    a("s_lshl_b32 s10, s4, 5")
    a("s_add_u32 s9, s9, s10")
    a("v_lshrrev_b32 v6, 1, v1")
    a("v_bfe_u32 v7, v1, 4, 1")
    a("v_lshlrev_b32 v7, 2, v7")
    a("v_xor_b32 v6, v6, v7")
    a("v_lshlrev_b32 v6, 13, v6")
    a("v_and_b32 v7, 1, v1")
    a("v_lshlrev_b32 v7, 4, v7")
    a("v_add_u32 v6, v6, v7")
    a("s_lshl_b32 s11, s9, 5")
    a("s_lshl_b32 s12, s3, 19")
    a("s_add_u32 s11, s11, s12")
    a("s_lshl_b32 s12, s3, 11")
    a(f"s_add_u32 s12, s12, {LDS_SC}")
    a("s_lshl_b32 s14, s3, 7")
    a("s_and_b32 s62, s3, 1")
    a("s_lshl_b32 s13, s4, 1")
    a("s_add_u32 s62, s62, s13")
    a("s_lshl_b32 s62, s62, 8")
    a(f"s_add_u32 s62, s62, {CNT_OFF}")
    a("s_waitcnt lgkmcnt(0)")
    srd(a, 52, sWS, WS_BYTES)
    srd(a, 68, sX, 1024)
    srd(a, 72, sWQ, 512 * 8192)
    a("s_cmp_lg_u32 s6, 0")
    a("s_cbranch_scc1 L_nocnt")
    a("v_mov_b32 v4, 0")
    a("s_mov_b64 exec, 1")
    a("buffer_store_dword v4, v4, s[52:55], s62 offen sc1")
    a("buffer_store_dword v4, v4, s[52:55], s62 offen offset:256 sc1")
    a("s_mov_b64 exec, -1")
    a("L_nocnt:")
    a(f"buffer_load_dwordx4 v[{O}:{O+3}], v2, s[68:71], 0 offen")
    a(f"buffer_load_dwordx4 v[{O+4}:{O+7}], v3, s[68:71], s14 offen")
    a(f"buffer_load_dwordx4 v[{O+8}:{O+11}], v3, s[68:71], s14 offen offset:64")
    for jj in range(2):
        a(f"s_add_u32 s13, s11, {jj*32*8192}")
        a(f"s_add_u32 m0, s12, {jj*1024}")
        a("buffer_load_dwordx4 v6, s[72:75], s13 offen lds")
    srd(a, 40, sK, 1 << 24, "s7")
    srd(a, 44, sV, 1 << 24, "s7")
    srd(a, 48, sDBG, 256)
    a(f"s_load_dword s15, s[{sWS}:{sWS+1}], {EPOCH_OFF}")

    def v_loads(slot, soff):
        out = []
        for n in range(8):
            grp = []
            if n == 0:
                grp.append(soff)
            if n == 4:
                grp.append("s_add_u32 s10, s10, 4096")
            r = VS + 32 * slot + 4 * n
            grp.append(f"buffer_load_dwordx4 v[{r}:{r+3}], v2, s[44:47], s10 offen offset:{1024*(n%4)}{vf}")
            out.append(grp)
        return out

    def k_loads(slot, soff):
        out = []
        for n in range(8):
            grp = []
            if n == 0:
                grp.append(soff)
                grp.append(f"s_add_u32 m0, s60, {slot*8192}")
            if n == 4:
                grp.append("s_add_u32 s10, s10, 4096")
                grp.append(f"s_add_u32 m0, s60, {slot*8192+4096}")
            grp.append(f"buffer_load_dwordx4 v{KV + (n & 3)}, s[40:43], s10 offen offset:{1024*(n%4)}{kf} lds")
            out.append(grp)
        return out

    def emit_groups(groups, throttle=None, already=0):
        n = already
        for grp in groups:
            if throttle is not None and n >= throttle:
                a(f"s_waitcnt vmcnt({throttle-1})")
            for l in grp:
                a(l)
            n += 1

    def stat_off(t):
        if skew:
            return f"s_add_u32 s10, s8, {t*256*8192}\ns_and_b32 s10, s10, 0xffffff"
        return f"s_add_u32 s10, s8, {t*256*8192}"

    H = 8
    emit_groups(v_loads(0, stat_off(0)))
    stamp(a, cfg, 0)
    a("v_lshrrev_b32 v4, 4, v1")
    a("v_and_b32 v5, 15, v1")
    a("v_lshlrev_b32 v6, 2, v4")
    a("v_xor_b32 v6, v6, v5")
    a("v_lshlrev_b32 v7, 8, v4")
    for v in range(4):
        a(f"v_xor_b32 v{KV+v}, {v}, v6")
        a(f"v_lshl_add_u32 v{KV+v}, v{KV+v}, 4, v7")
    a("v_and_b32 v6, 3, v1")
    a("v_lshlrev_b32 v6, 10, v6")
    a("v_bfe_u32 v7, v1, 2, 2")
    a("v_lshl_add_u32 v6, v7, 8, v6")
    a("v_xor_b32 v7, v4, v5")
    a("v_lshl_add_u32 v6, v7, 4, v6")
    a("v_add_u32 v6, s60, v6")
    for i in range(4):
        a(f"v_xor_b32 v{KA+i}, {i << 6}, v6")
    a("s_sub_u32 s10, s5, s4")
    a("s_and_b32 s10, s10, 31")
    a("s_mov_b32 s59, 0")
    a("s_lshl_b32 s11, s4, 2")
    a("s_add_u32 s11, s11, s10")
    a("s_cmp_lt_u32 s10, 4")
    a("s_cselect_b32 s59, 1, s59")
    a("s_cselect_b32 s64, s11, 0")
    a("s_sub_u32 s13, s10, 4")
    a("s_sub_u32 s11, s11, 4")
    a("s_cmp_lt_u32 s13, 4")
    a("s_cselect_b32 s13, s11, 0xffff")
    a("s_cmp_lt_u32 s13, 28")
    a("s_cselect_b32 s59, 2, s59")
    a("s_cselect_b32 s64, s13, s64")
    a("s_lshl_b32 s11, s4, 1")
    a("s_cmp_eq_u32 s10, 8")
    a("s_cselect_b32 s59, 3, s59")
    a("s_cselect_b32 s64, s11, s64")
    a("s_add_u32 s11, s11, 1")
    a("s_cmp_eq_u32 s10, 16")
    a("s_cselect_b32 s59, 3, s59")
    a("s_cselect_b32 s64, s11, s64")
    a("v_bfe_u32 v7, v1, 2, 2")
    a(f"v_lshlrev_b32 v{KO}, 3, v4")
    a(f"v_add_u32 v{KO}, v{KO}, v7")
    a(f"v_and_b32 v{KO+1}, 1, v4")
    a(f"v_lshlrev_b32 v{KO+1}, 2, v{KO+1}")
    a(f"v_xor_b32 v{KO}, v{KO}, v{KO+1}")
    a(f"v_xor_b32 v{KO+1}, 4, v{KO}")
    a("v_and_b32 v7, 3, v1")
    a("v_lshlrev_b32 v7, 3, v7")
    a(f"v_lshlrev_b32 v{KO}, 5, v{KO}")
    a(f"v_lshlrev_b32 v{KO+1}, 5, v{KO+1}")
    a(f"v_add3_u32 v{KO}, v{KO}, v7, s12")
    a(f"v_add3_u32 v{KO+1}, v{KO+1}, v7, s12")
    a("s_lshl_b32 s11, s3, 6")
    a(f"s_add_u32 s11, s11, {LDS_QP}")
    a("v_add_u32 v6, s11, v3")
    a(f"s_waitcnt vmcnt({H+4})")
    xs = [f"v{O+12+j}" for j in range(8)]
    xo = [f"v{T+j}" for j in range(16)]
    for j in range(4):
        unpack(a, xs[2*j], xs[2*j+1], f"v{O+j}")
    ln_stats(a, xs, TA, TB, TC, TD, TE)
    a(f"s_waitcnt vmcnt({H+2})")
    for j in range(8):
        unpack(a, xo[2*j], xo[2*j+1], f"v{O+4+j}")
    for j in range(16):
        ln_apply(a, xo[j], TD, TE, TC, TA, TB)
    for j in range(8):
        a(f"v_cvt_pk_bf16_f32 v{O+4+j}, {xo[2*j]}, {xo[2*j+1]}")
    a(f"s_waitcnt vmcnt({H})")
    stamp(a, cfg, 9)
    for ks in range(2):
        a(f"ds_read_b64_tr_b16 v[{Q+4*ks}:{Q+1+4*ks}], v{KO} offset:{ks*1024}")
        a(f"ds_read_b64_tr_b16 v[{Q+2+4*ks}:{Q+3+4*ks}], v{KO+1} offset:{ks*1024}")
    a("s_waitcnt lgkmcnt(0)")
    a(f"v_mfma_f32_16x16x32_bf16 v[{S}:{S+3}], v[{Q}:{Q+3}], v[{O+4}:{O+7}], 0")
    a(f"v_mfma_f32_16x16x32_bf16 v[{S}:{S+3}], v[{Q+4}:{Q+7}], v[{O+8}:{O+11}], v[{S}:{S+3}]")
    a(f"ds_write_b128 v6, v[{S}:{S+3}]")
    a("s_waitcnt lgkmcnt(0)")
    a("s_barrier")
    a("s_cmp_lg_u32 s3, 0")
    a("s_cbranch_scc1 L_pubq_done")
    stamp(a, cfg, 10)
    a("v_lshlrev_b32 v6, 2, v5")
    a(f"v_add_u32 v7, {LDS_QP}, v6")
    for w in range(8):
        a(f"ds_read_b32 v{T+w}, v7 offset:{w*64}")
    a("s_add_u32 s15, s15, 1")
    a("s_lshl_b32 s11, s9, 6")
    a(f"s_add_u32 s11, s11, {QG_OFF}")
    a(f"v_mov_b32 v{T+9}, s15")
    a("s_waitcnt lgkmcnt(0)")
    for w in range(1, 8):
        a(f"v_add_f32 v{T}, v{T}, v{T+w}")
    a(f"v_mov_b32_dpp v{T+1}, v{T} quad_perm:[1,0,3,2] row_mask:0xf bank_mask:0xf")
    a(f"v_cvt_pk_bf16_f32 v{T+8}, v{T}, v{T+1}")
    a("s_mov_b64 exec, 0x5555")
    a(f"buffer_store_dwordx2 v[{T+8}:{T+9}], v6, s[52:55], s11 offen sc1")
    a("s_mov_b64 exec, -1")
    stamp(a, cfg, 1)
    a("L_pubq_done:")
    a("s_barrier")
    a("s_mov_b32 s9, s64")

    def fill(tag, dma):
        a("s_cmp_eq_u32 s3, 0")
        a(f"s_cbranch_scc1 L_f0_{tag}")
        emit_groups(dma, throttle=TH, already=H)
        a("s_branch L_fill_done")
        a(f"L_f0_{tag}:")
        emit_groups(dma)
        a("s_branch L_fill_done")

    a("s_cmp_eq_u32 s59, 0")
    a("s_cbranch_scc1 L_fillN")
    a("s_cmp_eq_u32 s59, 3")
    a("s_cbranch_scc1 L_fillD")
    a("v_bfe_u32 v4, v1, 1, 2")
    a("v_bfe_u32 v5, v1, 4, 1")
    a("v_xor_b32 v4, v4, v5")
    a("v_lshlrev_b32 v4, 5, v4")
    a("v_and_b32 v5, 1, v1")
    a("v_lshl_add_u32 v4, v5, 4, v4")
    a("v_xor_b32 v5, 64, v4")
    a("v_lshrrev_b32 v6, 3, v1")
    a("s_cmp_eq_u32 s59, 2")
    a("s_cbranch_scc1 L_fillC")
    a("s_lshl_b32 s11, s9, 17")
    srd(a, 68, sWO, 1 << 17, "s11")
    a("v_lshl_add_u32 v4, v6, 10, v4")
    a("v_lshl_add_u32 v5, v6, 10, v5")
    a("s_lshl_b32 s11, s3, 7")
    dma = []
    for n in range(16):
        dma.append([f"s_add_u32 s13, s11, {n*8192}", f"s_add_u32 m0, s60, {n*1024}",
                    f"buffer_load_dwordx4 v{4 + (n & 1)}, s[68:71], s13 offen{ntf} lds"])
    fill("B", dma)
    a("L_fillC:")
    srd(a, 68, sWG, 512 * 3584)
    srd(a, 72, sWU, 512 * 3584)
    a("s_movk_i32 s11, 3584")
    a("v_mul_lo_u32 v6, v6, s11")
    a("v_add_u32 v4, v4, v6")
    a("v_add_u32 v5, v5, v6")
    a("s_lshl_b32 s11, s9, 7")
    a(f"s_mul_i32 s13, s3, {64*3584}")
    a("s_add_u32 s11, s11, s13")
    dma = []
    for n in range(16):
        mat = n >> 3
        dma.append([f"s_add_u32 s13, s11, {(n & 7)*8*3584}", f"s_add_u32 m0, s60, {n*1024}",
                    f"buffer_load_dwordx4 v{4 + (n & 1)}, s[{68+4*mat}:{71+4*mat}], s13 offen{ntf} lds"])
    fill("C", dma)
    a("L_fillD:")
    srd(a, 68, sWD, 1792 * 1024)
    a("v_and_b32 v4, 3, v1")
    a("v_bfe_u32 v5, v1, 5, 1")
    a("v_lshlrev_b32 v5, 1, v5")
    a("v_xor_b32 v4, v4, v5")
    a("v_lshlrev_b32 v4, 4, v4")
    a("v_lshrrev_b32 v5, 2, v1")
    a("v_lshl_add_u32 v4, v5, 10, v4")
    a("s_lshl_b32 s11, s9, 6")
    a(f"s_mul_i32 s13, s3, {224*1024}")
    a("s_add_u32 s11, s11, s13")
    dma = []
    for n in range(14):
        dma.append([f"s_add_u32 s13, s11, {n*16*1024}", f"s_add_u32 m0, s60, {n*1024}",
                    "buffer_load_dwordx4 v4, s[68:71], s13 offen lds"])
    fill("D", dma)
    a("L_fillN:")
    a("L_fill_done:")
    a("s_cmp_lg_u32 s3, 0")
    a("s_cbranch_scc1 L_w17_rest")
    a("s_cmp_lg_u32 s59, 0")
    a("s_cbranch_scc1 L_w0_poll")
    emit_groups(k_loads(0, stat_off(0)) + k_loads(1, stat_off(1)))
    a("L_w0_poll:")
    a("s_lshl_b32 s11, s4, 11")
    a(f"s_add_u32 s11, s11, {QG_OFF}")
    a(f"s_mov_b32 s57, {SPIN}")
    a("L_pq_loop:")
    a(f"buffer_load_dwordx4 v[{T}:{T+3}], v2, s[52:55], s11 offen sc1")
    a(f"buffer_load_dwordx4 v[{T+4}:{T+7}], v2, s[52:55], s11 offen offset:1024 sc1")
    a("s_waitcnt vmcnt(0)")
    for j in (1, 3, 5, 7):
        a(f"v_xor_b32 v{T+j}, s15, v{T+j}")
    a(f"v_or3_b32 v{T+1}, v{T+1}, v{T+3}, v{T+5}")
    a(f"v_or_b32 v{T+1}, v{T+1}, v{T+7}")
    a(f"v_cmp_ne_u32 vcc, 0, v{T+1}")
    a("s_cmp_eq_u64 vcc, 0")
    a("s_cbranch_scc1 L_pq_done")
    a("s_sub_u32 s57, s57, 1")
    a("s_cmp_eq_u32 s57, 0")
    a("s_cbranch_scc1 L_pq_done")
    a("s_sleep 1")
    a("s_branch L_pq_loop")
    a("L_pq_done:")
    stamp(a, cfg, 2)
    a("v_lshlrev_b32 v6, 3, v1")
    a(f"v_add_u32 v6, {LDS_Q}, v6")
    a(f"v_mov_b32 v{T+1}, v{T+2}")
    a(f"v_mov_b32 v{T+5}, v{T+6}")
    a(f"ds_write_b64 v6, v[{T}:{T+1}]")
    a(f"ds_write_b64 v6, v[{T+4}:{T+5}] offset:512")
    for j in range(4):
        a(f"v_mov_b32 v{T+8+j}, -1")
    SEN = f"v[{T+8}:{T+11}]"
    a("v_lshrrev_b32 v6, 5, v1")
    a("v_lshlrev_b32 v6, 14, v6")
    a("v_and_b32 v7, 31, v1")
    a("v_lshl_add_u32 v6, v7, 4, v6")
    a("s_lshl_b32 s11, s4, 16")
    a("s_lshl_b32 s13, s5, 9")
    a("s_add_u32 s11, s11, s13")
    a(f"s_add_u32 s11, s11, {PO_OFF}")
    a(f"buffer_store_dwordx4 {SEN}, v6, s[52:55], s11 offen sc1")
    a("s_add_u32 s11, s11, 0x8000")
    a(f"buffer_store_dwordx4 {SEN}, v6, s[52:55], s11 offen sc1")
    a("v_lshlrev_b32 v6, 8, v1")
    a("s_lshl_b32 s11, s4, 10")
    a("s_lshl_b32 s13, s5, 3")
    a("s_add_u32 s11, s11, s13")
    a(f"s_add_u32 s11, s11, {ML_OFF}")
    a("s_mov_b64 exec, 0xf")
    a(f"buffer_store_dwordx2 v[{T+8}:{T+9}], v6, s[52:55], s11 offen sc1")
    a("s_mov_b64 exec, -1")
    a("s_cmp_eq_u32 s59, 1")
    a("s_cbranch_scc1 L_rst_B")
    a("s_cmp_lg_u32 s59, 2")
    a("s_cbranch_scc1 L_rst_done")
    a("s_lshl_b32 s11, s9, 7")
    a(f"s_add_u32 s11, s11, {HID_OFF}")
    a("s_mov_b64 exec, 0xff")
    a(f"buffer_store_dwordx4 {SEN}, v2, s[52:55], s11 offen sc1")
    a("s_mov_b64 exec, -1")
    a("s_cmp_lg_u32 s9, 0")
    a("s_cbranch_scc1 L_rst_done")
    a(f"s_mov_b32 s11, {H_OFF}")
    a("s_branch L_rst_2k")
    a("L_rst_B:")
    a("s_lshl_b32 s11, s9, 11")
    a(f"s_add_u32 s11, s11, {ATT_OFF}")
    a("L_rst_2k:")
    a(f"buffer_store_dwordx4 {SEN}, v2, s[52:55], s11 offen sc1")
    a(f"buffer_store_dwordx4 {SEN}, v2, s[52:55], s11 offen offset:1024 sc1")
    a("L_rst_done:")
    emit_groups(v_loads(1, stat_off(1)))
    a("s_branch L_role_w")
    a("L_w17_rest:")
    a("s_cmp_lg_u32 s59, 0")
    a("s_cbranch_scc1 L_w17_role")
    emit_groups(k_loads(0, stat_off(0)) + k_loads(1, stat_off(1)) + v_loads(1, stat_off(1)), throttle=TH, already=H)
    a("s_branch L_pre_done")
    a("L_w17_role:")
    emit_groups(v_loads(1, stat_off(1)), throttle=TH, already=TH)
    a("L_role_w:")
    a("s_cmp_eq_u32 s59, 0")
    a("s_cbranch_scc1 L_pre_done")
    a("v_lshrrev_b32 v4, 4, v1")
    a("v_bfe_u32 v5, v1, 2, 2")
    a("v_and_b32 v6, 3, v1")
    a("v_lshlrev_b32 v6, 3, v6")
    a("v_add_u32 v6, s60, v6")
    a("v_lshl_add_u32 v7, v4, 3, v5")
    a("s_cmp_eq_u32 s59, 3")
    a("s_cbranch_scc1 L_trD")
    a("v_lshl_add_u32 v6, v7, 7, v6")
    a("v_lshrrev_b32 v5, 1, v5")
    a("v_and_b32 v4, 1, v4")
    a("v_lshl_add_u32 v5, v4, 1, v5")
    for nb in range(4):
        a(f"v_xor_b32 v{KO+nb}, {nb}, v5")
        a(f"v_lshl_add_u32 v{KO+nb}, v{KO+nb}, 5, v6")
    a("s_waitcnt vmcnt(8)")
    for nb in range(4):
        for ks in range(4):
            r = W + 16 * nb + 4 * ks
            for half in range(2):
                a(f"ds_read_b64_tr_b16 v[{r+2*half}:{r+2*half+1}], v{KO+nb} offset:{ks*4096 + half*512}")
        a("s_waitcnt lgkmcnt(0)")
    a("s_branch L_trdone")
    a("L_trD:")
    a("v_lshl_add_u32 v6, v7, 6, v6")
    a("v_and_b32 v4, 1, v4")
    for nb in range(2):
        a(f"v_xor_b32 v{KO+nb}, {nb}, v4")
        a(f"v_lshl_add_u32 v{KO+nb}, v{KO+nb}, 5, v6")
    a("s_waitcnt vmcnt(8)")
    for nb in range(2):
        for ks in range(7):
            r = W + 28 * nb + 4 * ks
            for half in range(2):
                a(f"ds_read_b64_tr_b16 v[{r+2*half}:{r+2*half+1}], v{KO+nb} offset:{ks*2048 + half*256}")
        a("s_waitcnt lgkmcnt(0)")
    a("L_trdone:")
    emit_groups(k_loads(0, stat_off(0)) + k_loads(1, stat_off(1)))
    a("L_pre_done:")
    a("s_waitcnt lgkmcnt(0)")
    a("s_barrier")
    stamp(a, cfg, 3)
    a("v_and_b32 v6, 3, v1")
    a("v_lshlrev_b32 v6, 8, v6")
    a("v_add_u32 v6, v6, v3")
    a(f"v_add_u32 v6, {LDS_Q}, v6")
    for i in range(4):
        a(f"ds_read_b128 v[{Q+4*i}:{Q+4*i+3}], v6 offset:{64*i}")
    for j in range(32):
        a(f"v_mov_b32 v{O+j}, 0")
    a(f"v_mov_b32 {MX}, 0xff800000")
    a(f"v_mov_b32 {LS}, 0")
    a("v_mov_b32 v4, 0")
    a(f"s_mov_b32 s11, {SCALE:#x}")
    a(f"s_mov_b32 s12, {LOG2E:#x}")
    a("s_mov_b32 s13, 0x05040100")
    a("s_mov_b32 s14, 0x07060302")
    a("s_and_b32 s65, s3, 1")
    a(f"s_add_u32 s65, s65, {256*NSTAT}")

    def ticket():
        a(f"v_mov_b32 {TK}, 1")
        a("s_mov_b64 exec, 1")
        a(f"buffer_atomic_add {TK}, v4, s[52:55], s62 offen sc0")
        a("s_mov_b64 exec, -1")

    def k_read(slot):
        for t16 in range(2):
            base = KO if t16 == 0 else T
            for i in range(4):
                a(f"ds_read_b128 v[{base+4*i}:{base+4*i+3}], v{KA+i} offset:{slot*8192 + t16*4096}")

    def qk_softmax():
        for t16 in range(2):
            base = KO if t16 == 0 else T
            for i in range(4):
                a(f"s_waitcnt lgkmcnt({7 - (4*t16 + i)})")
                c = "0" if i == 0 else f"v[{S+4*t16}:{S+4*t16+3}]"
                a(f"v_mfma_f32_16x16x32_bf16 v[{S+4*t16}:{S+4*t16+3}], v[{base+4*i}:{base+4*i+3}], v[{Q+4*i}:{Q+4*i+3}], {c}")

    def softmax():
        for j in range(4):
            a(f"v_cvt_pk_bf16_f32 {TA}, v{S+2*j}, v{S+2*j+1}")
            unpack(a, TB, TC, TA)
            a(f"v_mul_f32 {TB}, s11, {TB}")
            a(f"v_mul_f32 {TC}, s11, {TC}")
            a(f"v_cvt_pk_bf16_f32 {TA}, {TB}, {TC}")
            unpack(a, f"v{A8+2*j}", f"v{A8+2*j+1}", TA)
        a(f"v_max3_f32 {TB}, v{A8}, v{A8+1}, v{A8+2}")
        a(f"v_max3_f32 {TC}, v{A8+3}, v{A8+4}, v{A8+5}")
        a(f"v_max3_f32 {TB}, {TB}, v{A8+6}, v{A8+7}")
        a(f"v_max3_f32 {TB}, {TB}, {TC}, {MX}")
        red_rows(a, TB, TA, "v_max_f32")
        a(f"v_sub_f32 {TC}, {MX}, {TB}")
        a(f"v_mul_f32 {TD}, s12, {TB}")
        a(f"v_mul_f32 {TC}, s12, {TC}")
        a(f"v_mov_b32 {MX}, {TB}")
        a(f"v_exp_f32 {TC}, {TC}")
        for j in range(8):
            a(f"v_fma_f32 v{A8+j}, v{A8+j}, s12, -{TD}")
        for j in range(8):
            a(f"v_exp_f32 v{A8+j}, v{A8+j}")
        a(f"v_mul_f32 {LS}, {LS}, {TC}")
        for j in range(32):
            a(f"v_mul_f32 v{O+j}, {TC}, v{O+j}")
        for j in range(4):
            a(f"v_cvt_pk_bf16_f32 v{P+j}, v{A8+2*j}, v{A8+2*j+1}")
        for j in range(8):
            a(f"v_add_f32 {LS}, {LS}, v{A8+j}")

    def pv(slot):
        r0 = VS + 32 * slot
        for j in range(4):
            tb = T + 8 * (j % 2)
            for p in range(4):
                lo_src = r0 + 4 * (2 * p) + j
                hi_src = r0 + 4 * (2 * p + 1) + j
                a(f"v_perm_b32 v{tb+p}, v{hi_src}, v{lo_src}, s13")
                a(f"v_perm_b32 v{tb+4+p}, v{hi_src}, v{lo_src}, s14")
            for e2 in range(2):
                e = 2 * j + e2
                a(f"v_mfma_f32_16x16x32_bf16 v[{O+4*e}:{O+4*e+3}], v[{tb+4*e2}:{tb+4*e2+3}], v[{P}:{P+3}], v[{O+4*e}:{O+4*e+3}]")

    a("s_waitcnt vmcnt(0) lgkmcnt(0)")
    a("s_cmp_lg_u32 s3, 0")
    a("s_cbranch_scc1 L_noflag")
    a(f"v_mov_b32 {TA}, 1")
    a("s_mov_b64 exec, 1")
    a(f"buffer_store_byte {TA}, v4, s[48:51], s2 offen sc1")
    a("s_mov_b64 exec, -1")
    a("L_noflag:")
    k_read(0)
    qk_softmax()
    emit_groups(k_loads(0, stat_off(2)))
    ticket()
    softmax()
    pv(0)
    emit_groups(v_loads(0, stat_off(2)))
    k_read(1)
    qk_softmax()
    softmax()
    pv(1)
    a("s_movk_i32 s66, 400")
    a("L_loop:")
    for s in range(2):
        a("s_waitcnt vmcnt(8)")
        if cfg.trace:
            a("s_memrealtime s[88:89]")
            a(f"v_readfirstlane_b32 s61, {TK}")
            a("s_min_u32 s61, s61, 1023")
            a(f"s_sub_u32 s90, s62, {CNT_OFF}")
            a("s_lshl_b32 s90, s90, 5")
            a("s_lshl_b32 s61, s61, 3")
            a("s_add_u32 s90, s90, s61")
            a(f"s_add_u32 s90, s90, {TS_OFF + 0x10000}")
            a("s_waitcnt lgkmcnt(0)")
            a("v_mov_b32 v254, s88")
            a("v_mov_b32 v255, s89")
            a("s_mov_b64 exec, 1")
            a("buffer_store_dwordx2 v[254:255], v4, s[52:55], s90 offen")
            a("s_mov_b64 exec, -1")
        k_read(s)
        a(f"v_readfirstlane_b32 s61, {TK}")
        a(f"s_cmp_lt_u32 s61, {NDYN}")
        a("s_cselect_b32 s63, 1, 0")
        a("s_lshl_b32 s61, s61, 1")
        a("s_add_u32 s61, s61, s65")
        a("s_lshl_b32 s61, s61, 13")
        if skew:
            a("s_add_u32 s61, s61, s67")
            a("s_and_b32 s61, s61, 0xffffff")
        a("s_cmp_eq_u32 s63, 1")
        a(f"s_cselect_b32 s61, s61, {OOB}")
        emit_groups(k_loads(s ^ 1, "s_mov_b32 s10, s61"))
        ticket()
        qk_softmax()
        softmax()
        a(f"s_waitcnt vmcnt({10 if cfg.trace else 9})")
        emit_groups(v_loads(s ^ 1, "s_mov_b32 s10, s61"))
        pv(s)
        a("s_cmp_eq_u32 s63, 0")
        a("s_cbranch_scc1 L_loop_done")
    a("s_sub_u32 s66, s66, 1")
    a("s_cmp_lg_u32 s66, 0")
    a("s_cbranch_scc1 L_loop")
    a("L_loop_done:")
    red_rows(a, LS, TA, "v_add_f32")
    stamp(a, cfg, 4)
    a("v_and_b32 v5, 3, v1")
    a("v_lshlrev_b32 v6, 9, v5")
    a("v_lshl_add_u32 v6, v3, 3, v6")
    a("s_lshl_b32 s10, s3, 11")
    a(f"s_add_u32 s10, s10, {LDS_SC}")
    a("v_add_u32 v6, s10, v6")
    for r in range(4):
        for e in range(8):
            a(f"v_mov_b32 v{KO+8*r+e}, v{O+4*e+r}")
    for r in range(4):
        a(f"ds_write_b128 v6, v[{KO+8*r}:{KO+8*r+3}] offset:{32*r}")
        a(f"ds_write_b128 v6, v[{KO+8*r+4}:{KO+8*r+7}] offset:{32*r+16}")
    a("v_lshlrev_b32 v5, 3, v5")
    a("s_lshl_b32 s10, s3, 5")
    a(f"s_add_u32 s10, s10, {LDS_ML}")
    a("v_add_u32 v5, s10, v5")
    a(f"ds_write_b64 v5, v[{MXr}:{MXr+1}]")
    a("s_waitcnt vmcnt(0) lgkmcnt(0)")
    a("s_barrier")
    a("s_cmp_ge_u32 s3, 2")
    a("s_cbranch_scc1 L_pub_done")
    a("v_lshrrev_b32 v4, 5, v0")
    a("v_lshlrev_b32 v5, 3, v4")
    a(f"v_add_u32 v5, {LDS_ML}, v5")
    a("v_lshlrev_b32 v6, 4, v0")
    a(f"v_add_u32 v6, {LDS_SC}, v6")
    for w in range(8):
        a(f"ds_read_b64 v[{8+2*w}:{9+2*w}], v5 offset:{32*w}")
    for w in range(7):
        a(f"ds_read_b128 v[{24+4*w}:{27+4*w}], v6 offset:{2048*w}")
    a("s_waitcnt lgkmcnt(7)")
    a(f"ds_read_b128 v[52:55], v6 offset:{2048*7}")
    a("v_max3_f32 v56, v8, v10, v12")
    a("v_max3_f32 v56, v56, v14, v16")
    a("v_max3_f32 v56, v56, v18, v20")
    a("v_max_f32 v56, v56, v22")
    for w in range(8):
        a(f"v_sub_f32 v{8+2*w}, v{8+2*w}, v56")
    for w in range(8):
        a(f"v_mul_f32 v{8+2*w}, s12, v{8+2*w}")
    for w in range(8):
        a(f"v_exp_f32 v{8+2*w}, v{8+2*w}")
    a("s_lshl_b32 s10, s4, 7")
    a("s_add_u32 s10, s10, s5")
    a("v_lshlrev_b32 v6, 5, v4")
    a("v_add_u32 v6, s10, v6")
    a("v_lshlrev_b32 v7, 9, v6")
    a("v_and_b32 v5, 31, v0")
    a("v_lshl_add_u32 v7, v5, 4, v7")
    a("v_lshlrev_b32 v6, 3, v6")
    a(f"s_mov_b32 s10, {PO_OFF}")
    a(f"s_mov_b32 s11, {ML_OFF}")
    a("s_waitcnt lgkmcnt(0)")
    for j in range(4):
        a(f"v_mul_f32 v{60+j}, v8, v{24+j}")
    for w in range(1, 8):
        for j in range(4):
            a(f"v_fmac_f32 v{60+j}, v{8+2*w}, v{24+4*w+j}")
    a("buffer_store_dwordx4 v[60:63], v7, s[52:55], s10 offen sc1")
    a("v_mul_f32 v57, v8, v9")
    for w in range(1, 8):
        a(f"v_fmac_f32 v57, v{8+2*w}, v{9+2*w}")
    a("s_mov_b32 exec_lo, 1")
    a("s_mov_b32 exec_hi, 1")
    a("buffer_store_dwordx2 v[56:57], v6, s[52:55], s11 offen sc1")
    a("s_mov_b64 exec, -1")
    a("L_pub_done:")
    stamp(a, cfg, 5)
    a("s_cmp_eq_u32 s59, 0")
    a("s_cbranch_scc1 L_done")
    a("s_cmp_eq_u32 s59, 2")
    a("s_cbranch_scc1 L_stC")
    a("s_cmp_eq_u32 s59, 3")
    a("s_cbranch_scc1 L_stD")

    a("v_lshrrev_b32 v4, 5, v1")
    a("v_lshlrev_b32 v4, 9, v4")
    a("v_and_b32 v5, 31, v1")
    a("v_lshl_add_u32 v4, v5, 4, v4")
    a("s_lshl_b32 s10, s9, 14")
    a("s_lshl_b32 s11, s3, 11")
    a("s_add_u32 s10, s10, s11")
    a(f"s_add_u32 s10, s10, {PO_OFF}")
    a("v_lshlrev_b32 v6, 3, v5")
    a("s_lshl_b32 s11, s9, 8")
    a(f"s_add_u32 s11, s11, {ML_OFF}")
    a("v_lshrrev_b32 v72, 5, v1")
    a("s_lshl_b32 s13, s3, 2")
    a("v_add_u32 v72, s13, v72")
    a("v_lshlrev_b32 v72, 2, v72")
    a("s_lshl_b32 s13, s3, 9")
    a("v_lshlrev_b32 v73, 4, v5")
    a("v_add_u32 v73, s13, v73")
    a("v_lshlrev_b32 v74, 3, v1")
    a("s_lshl_b32 s13, s3, 8")
    a("s_add_u32 s13, s13, 4096")
    a("v_lshlrev_b32 v75, 2, v1")
    a("v_add_u32 v75, s13, v75")
    a("v_add_u32 v76, s13, v3")
    a("s_lshl_b32 s13, s3, 8")
    a("s_lshl_b32 s14, s9, 11")
    a("s_add_u32 s14, s14, s13")
    a(f"s_add_u32 s14, s14, {ATT_OFF}")
    a("v_and_b32 v7, 15, v1")
    a("v_lshl_add_u32 v77, v7, 6, v3")
    for nb in range(1, 4):
        a(f"v_cmp_eq_u32 s[{76+2*nb}:{77+2*nb}], {nb}, v7")
    flagcheck(a, "v78", "v79")
    stamp(a, cfg, 6)
    poll(a, [
        (["buffer_load_dwordx4 v[8:11], v4, s[52:55], s10 offen sc1"], ["v8", "v9", "v10", "v11"]),
        (["buffer_load_dwordx4 v[12:15], v4, s[52:55], s10 offen offset:1024 sc1"], ["v12", "v13", "v14", "v15"]),
        (["buffer_load_dwordx2 v[16:17], v6, s[52:55], s11 offen sc1"], ["v16", "v17"]),
    ], "v78")
    stamp(a, cfg, 7)
    a("v_mov_b32 v18, v16")
    for r in (8, 4, 2, 1):
        a(f"v_max_f32_dpp v18, v18, v18 row_ror:{r} row_mask:0xf bank_mask:0xf")
    a("v_mov_b32 v19, v18")
    a("v_permlane16_swap_b32 v19, v18")
    a("v_max_f32 v18, v19, v18")
    a("v_sub_f32 v16, v16, v18")
    a("v_mul_f32 v16, s12, v16")
    a("v_exp_f32 v16, v16")
    a("v_mul_f32 v17, v16, v17")
    a("ds_bpermute_b32 v20, v72, v16")
    a("ds_bpermute_b32 v21, v72, v16 offset:8")
    row16_sum(a, "v17")
    a("v_mov_b32 v19, v17")
    a("v_permlane16_swap_b32 v19, v17")
    a("v_add_f32 v17, v19, v17")
    a("v_rcp_f32 v19, v17")
    a("s_waitcnt lgkmcnt(0)")
    for j in range(4):
        a(f"v_mul_f32 v{8+j}, v20, v{8+j}")
    for j in range(4):
        a(f"v_fmac_f32 v{8+j}, v21, v{12+j}")
    for j in range(4):
        a(f"v_mov_b32 v{24+j}, v{8+j}")
    for j in range(4):
        a(f"v_permlane32_swap_b32 v{24+j}, v{8+j}")
    for j in range(4):
        a(f"v_add_f32 v{8+j}, v{24+j}, v{8+j}")
    a("ds_write_b128 v73, v[8:11]")
    a("s_waitcnt lgkmcnt(0)")
    a("s_barrier")
    for w in range(8):
        a(f"ds_read_b64 v[{24+2*w}:{25+2*w}], v74 offset:{512*w}")
    a("s_waitcnt lgkmcnt(0)")
    for w in range(1, 8):
        a(f"v_add_f32 v24, v24, v{24+2*w}")
        a(f"v_add_f32 v25, v25, v{25+2*w}")
    for j in range(2):
        a(f"v_mul_f32 v{26+j}, v{24+j}, v19")
    for j in range(2):
        a(f"v_fma_f32 v{28+j}, -v{26+j}, v17, v{24+j}")
    for j in range(2):
        a(f"v_fma_f32 v{24+j}, v{28+j}, v19, v{26+j}")
    a("v_cvt_pk_bf16_f32 v24, v24, v25")
    a("ds_write_b32 v75, v24")
    a("s_waitcnt lgkmcnt(0)")
    for ks in range(4):
        a(f"ds_read_b128 v[{32+4*ks}:{35+4*ks}], v76 offset:{64*ks}")
    for ks in range(4):
        a(f"s_waitcnt lgkmcnt({3-ks})")
        for nb in range(4):
            r = W + 16 * nb + 4 * ks
            c = "0" if ks == 0 else f"v[{48+4*nb}:{51+4*nb}]"
            a(f"v_mfma_f32_16x16x32_bf16 v[{48+4*nb}:{51+4*nb}], v[{r}:{r+3}], v[{32+4*ks}:{35+4*ks}], {c}")
    for nb in range(1, 4):
        for j in range(4):
            a(f"v_cndmask_b32 v{48+j}, v{48+j}, v{48+4*nb+j}, s[{76+2*nb}:{77+2*nb}]")
    a("s_mov_b32 exec_lo, 0x000f000f")
    a("s_mov_b32 exec_hi, 0x000f000f")
    a("buffer_store_dwordx4 v[48:51], v77, s[52:55], s14 offen sc1")
    a("s_mov_b64 exec, -1")
    stamp(a, cfg, 8)
    a("s_branch L_done")

    a("L_stC:")
    srd(a, 72, sX, 1024)
    a("v_and_b32 v5, 15, v1")
    a("v_lshlrev_b32 v6, 3, v5")
    a("s_lshl_b32 s10, s3, 7")
    a("buffer_load_dwordx2 v[64:65], v6, s[72:75], s10 offen")
    a("v_lshlrev_b32 v6, 7, v3")
    a("v_lshl_add_u32 v6, v5, 4, v6")
    a("s_lshl_b32 s10, s3, 8")
    a(f"s_add_u32 s10, s10, {ATT_OFF}")
    for i in range(8):
        a(f"s_add_u32 s{76+i}, s10, {i*8192}")
    a("s_lshl_b32 s13, s3, 3")
    a("v_mov_b32 v70, s13")
    a("v_mov_b32 v71, 0")
    a("s_lshl_b32 s13, s3, 7")
    a("s_add_u32 s13, s13, 1024")
    a("v_lshlrev_b32 v72, 3, v5")
    a("v_add_u32 v72, s13, v72")
    a("v_add_u32 v73, s13, v3")
    a("s_lshl_b32 s13, s3, 9")
    a("s_add_u32 s13, s13, 4096")
    a("v_add_u32 v74, s13, v3")
    a("v_lshlrev_b32 v75, 2, v1")
    a("v_add_u32 v75, 4096, v75")
    a("v_lshlrev_b32 v76, 1, v1")
    a("s_lshl_b32 s14, s9, 7")
    a(f"s_add_u32 s14, s14, {HID_OFF}")
    a("v_lshlrev_b32 v77, 4, v5")
    a("s_lshl_b32 s11, s3, 8")
    a(f"s_add_u32 s11, s11, {H_OFF}")
    flagcheck(a, "v78", "v79")
    for j in range(2):
        unpack(a, f"v{66+2*j}", f"v{67+2*j}", f"v{64+j}")
    stamp(a, cfg, 6)
    poll(a, [([f"buffer_load_dwordx4 v[{16+4*i}:{19+4*i}], v6, s[52:55], s{76+i} offen sc1"],
              [f"v{16+4*i+j}" for j in range(4)]) for i in range(8)], "v78")
    stamp(a, cfg, 7)
    for i in (0, 2, 4, 6):
        for j in range(4):
            a(f"v_add_f32 v{16+4*i+j}, v{16+4*i+j}, v{20+4*i+j}")
    for i in (0, 4):
        for j in range(4):
            a(f"v_add_f32 v{16+4*i+j}, v{16+4*i+j}, v{24+4*i+j}")
    for j in range(4):
        a(f"v_add_f32 v{16+j}, v{16+j}, v{32+j}")
    for sw in ("16", "32"):
        for j in range(4):
            a(f"v_mov_b32 v{20+j}, v{16+j}")
        for j in range(4):
            a(f"v_permlane{sw}_swap_b32 v{20+j}, v{16+j}")
        for j in range(4):
            a(f"v_add_f32 v{16+j}, v{20+j}, v{16+j}")
    a("v_cvt_pk_bf16_f32 v20, v16, v17")
    a("v_cvt_pk_bf16_f32 v21, v18, v19")
    unpack(a, "v16", "v17", "v20")
    unpack(a, "v18", "v19", "v21")
    for j in range(4):
        a(f"v_add_f32 v{16+j}, v{16+j}, v{66+j}")
    a("v_cvt_pk_bf16_f32 v20, v16, v17")
    a("v_cvt_pk_bf16_f32 v21, v18, v19")
    unpack(a, "v16", "v17", "v20")
    unpack(a, "v18", "v19", "v21")
    a("v_add_f32 v24, v16, v17")
    a("v_add_f32 v25, v18, v19")
    a("v_add_f32 v24, v24, v25")
    row16_sum(a, "v24")
    a("v_mul_f32 v26, 0x3c800000, v24")
    for j in range(4):
        a(f"v_sub_f32 v{28+j}, v{16+j}, v26")
    a("v_mul_f32 v25, v28, v28")
    for j in range(1, 4):
        a(f"v_fmac_f32 v25, v{28+j}, v{28+j}")
    row16_sum(a, "v25")
    a("ds_write_b64 v70, v[24:25]")
    a("s_cmp_lg_u32 s9, 0")
    a("s_cbranch_scc1 L_C_noh")
    a("s_mov_b64 exec, 0xffff")
    a("buffer_store_dwordx4 v[16:19], v77, s[52:55], s11 offen sc1")
    a("s_mov_b64 exec, -1")
    a("L_C_noh:")
    a("s_waitcnt lgkmcnt(0)")
    a("s_barrier")
    for i in range(4):
        a(f"ds_read_b128 v[{32+4*i}:{35+4*i}], v71 offset:{16*i}")
    a("s_waitcnt lgkmcnt(0)")
    a("v_add_f32 v24, v32, v34")
    a("v_add_f32 v25, v36, v38")
    a("v_add_f32 v26, v40, v42")
    a("v_add_f32 v27, v44, v46")
    a("v_add_f32 v24, v24, v25")
    a("v_add_f32 v26, v26, v27")
    a("v_add_f32 v24, v24, v26")
    a("v_mul_f32 v24, 0x3b000000, v24")
    a("v_add_f32 v25, v33, v35")
    a("v_add_f32 v26, v37, v39")
    a("v_add_f32 v27, v41, v43")
    a("v_add_f32 v28, v45, v47")
    a("s_mov_b32 s10, 0x3c800000")
    for w in range(8):
        a(f"v_fma_f32 v{32+2*w}, v{32+2*w}, s10, -v24")
    a("v_add_f32 v25, v25, v26")
    a("v_add_f32 v27, v27, v28")
    a("v_mul_f32 v26, v32, v32")
    a("v_mul_f32 v28, v34, v34")
    for w in (2, 4, 6):
        a(f"v_fmac_f32 v26, v{32+2*w}, v{32+2*w}")
        a(f"v_fmac_f32 v28, v{34+2*w}, v{34+2*w}")
    a("v_add_f32 v25, v25, v27")
    a("v_add_f32 v26, v26, v28")
    a("v_fmac_f32 v25, 0x42800000, v26")
    a("v_mul_f32 v25, 0x3b000000, v25")
    a("v_cvt_pk_bf16_f32 v26, v24, v25")
    unpack(a, "v24", "v25", "v26")
    a(f"v_add_f32 v25, {EPS:#x}, v25")
    for j in range(4):
        a(f"v_sub_f32 v{16+j}, v{16+j}, v24")
    bf16r(a, "v25", "v25")
    a("v_sqrt_f32 v25, v25")
    a("v_cvt_pk_bf16_f32 v20, v16, v17")
    a("v_cvt_pk_bf16_f32 v21, v18, v19")
    bf16r(a, "v25", "v25")
    a("v_rcp_f32 v26, v25")
    unpack(a, "v16", "v17", "v20")
    unpack(a, "v18", "v19", "v21")
    for j in range(4):
        a(f"v_mul_f32 v{28+j}, v{16+j}, v26")
    for j in range(4):
        a(f"v_fma_f32 v{20+j}, -v{28+j}, v25, v{16+j}")
    for j in range(4):
        a(f"v_fma_f32 v{16+j}, v{20+j}, v26, v{28+j}")
    a("v_cvt_pk_bf16_f32 v20, v16, v17")
    a("v_cvt_pk_bf16_f32 v21, v18, v19")
    a("ds_write_b64 v72, v[20:21]")
    a("s_waitcnt lgkmcnt(0)")
    a("ds_read_b128 v[24:27], v73")
    a("ds_read_b128 v[28:31], v73 offset:64")
    for ks in range(2):
        a(f"s_waitcnt lgkmcnt({1-ks})")
        for blk in range(8):
            mat, nb = divmod(blk, 4)
            r = W + 16 * nb + 4 * (2 * mat + ks)
            c = "0" if ks == 0 else f"v[{32+4*blk}:{35+4*blk}]"
            a(f"v_mfma_f32_16x16x32_bf16 v[{32+4*blk}:{35+4*blk}], v[{r}:{r+3}], v[{24+4*ks}:{27+4*ks}], {c}")
    a("s_mov_b32 exec_lo, 0x00010001")
    a("s_mov_b32 exec_hi, 0x00010001")
    for blk in range(8):
        a(f"ds_write_b128 v74, v[{32+4*blk}:{35+4*blk}] offset:{64*blk}")
    a("s_mov_b64 exec, -1")
    a("s_waitcnt lgkmcnt(0)")
    a("s_barrier")
    a("s_cmp_lg_u32 s3, 0")
    a("s_cbranch_scc1 L_done")
    for w in range(8):
        a(f"ds_read2_b32 v[{16+2*w}:{17+2*w}], v75 offset0:{(128*w) % 256} offset1:{(128*w) % 256 + 64}")
        if w % 2 == 1 and w < 7:
            a("v_add_u32 v75, 1024, v75")
    a("s_waitcnt lgkmcnt(0)")
    for w in range(1, 8):
        a(f"v_add_f32 v16, v16, v{16+2*w}")
        a(f"v_add_f32 v17, v17, v{17+2*w}")
    a("v_cvt_pk_bf16_f32 v18, v16, v17")
    unpack(a, "v16", "v17", "v18")
    a("v_mul_f32 v18, s12, v16")
    a("v_exp_f32 v18, -v18")
    a("v_add_f32 v18, 1.0, v18")
    a("v_rcp_f32 v19, v18")
    a("v_fma_f32 v18, -v18, v19, 1.0")
    a("v_fma_f32 v19, v18, v19, v19")
    bf16r(a, "v19", "v19")
    a("v_mul_f32 v16, v19, v17")
    a("v_mov_b32_dpp v17, v16 quad_perm:[1,0,3,2] row_mask:0xf bank_mask:0xf")
    a("v_cvt_pk_bf16_f32 v16, v16, v17")
    a("s_mov_b32 exec_lo, 0x55555555")
    a("s_mov_b32 exec_hi, 0x55555555")
    a("buffer_store_dword v16, v76, s[52:55], s14 offen sc1")
    a("s_mov_b64 exec, -1")
    stamp(a, cfg, 8)
    a("s_branch L_done")

    a("L_stD:")
    srd(a, 72, sOUT, 1024)
    a("s_mul_i32 s10, s3, 448")
    a(f"s_add_u32 s10, s10, {HID_OFF}")
    a("v_and_b32 v5, 31, v1")
    a("v_lshlrev_b32 v5, 2, v5")
    a("s_lshl_b32 s11, s9, 7")
    a(f"s_add_u32 s11, s11, {H_OFF}")
    a("s_lshl_b32 s13, s3, 7")
    a("v_add_u32 v6, s13, v3")
    a("v_lshrrev_b32 v7, 1, v5")
    a("s_lshl_b32 s14, s9, 6")
    flagcheck(a, "v78", "v79")
    stamp(a, cfg, 6)
    B = 32
    poll(a, [([f"buffer_load_dwordx4 v[{B+4*ks}:{B+4*ks+3}], v3, s[52:55], s10 offen offset:{64*ks} sc1" for ks in range(7)]
              + ["buffer_load_dword v20, v5, s[52:55], s11 offen sc1"],
              [f"v{B+j}" for j in range(28)] + ["v20"])], "v78")
    stamp(a, cfg, 7)
    for ks in range(7):
        for nb in range(2):
            r = W + 28 * nb + 4 * ks
            c = "0" if ks == 0 else f"v[{8+4*nb}:{11+4*nb}]"
            a(f"v_mfma_f32_16x16x32_bf16 v[{8+4*nb}:{11+4*nb}], v[{r}:{r+3}], v[{B+4*ks}:{B+4*ks+3}], {c}")
    a("ds_write_b128 v6, v[8:11]")
    a("ds_write_b128 v6, v[12:15] offset:64")
    a("s_waitcnt lgkmcnt(0)")
    a("s_barrier")
    a("s_cmp_lg_u32 s3, 0")
    a("s_cbranch_scc1 L_done")
    for w in range(8):
        a(f"ds_read_b32 v{8+w}, v5 offset:{128*w}")
    a("s_waitcnt lgkmcnt(0)")
    for w in (0, 2, 4, 6):
        a(f"v_add_f32 v{8+w}, v{8+w}, v{9+w}")
    a("v_add_f32 v8, v8, v10")
    a("v_add_f32 v12, v12, v14")
    a("v_add_f32 v8, v8, v12")
    bf16r(a, "v8", "v8")
    a("v_add_f32 v8, v8, v20")
    a("v_mov_b32_dpp v9, v8 quad_perm:[1,0,3,2] row_mask:0xf bank_mask:0xf")
    a("v_cvt_pk_bf16_f32 v8, v8, v9")
    a("s_mov_b64 exec, 0x55555555")
    a("buffer_store_dword v8, v7, s[72:75], s14 offen")
    a("s_cmp_lg_u32 s9, 0")
    a("s_cbranch_scc1 L_noepoch")
    a("s_mov_b64 exec, 1")
    a("v_mov_b32 v12, s15")
    a("v_mov_b32 v13, 0")
    a(f"s_mov_b32 s10, {EPOCH_OFF}")
    a("buffer_store_dword v12, v13, s[52:55], s10 offen")
    a("L_noepoch:")
    a("s_mov_b64 exec, -1")
    stamp(a, cfg, 8)
    a("L_done:")
    a("s_endpgm")

    nv = 256
    head = [f"; @launch grid=(256,1,1) block=(512,1,1) lds={LDS_TOTAL}",
            '.amdgcn_target "amdgcn-amd-amdhsa--gfx950"']
    desc = ['.section .rodata,"a"', kernel_desc(name, nv, max(a.maxs + 1, 16), nv)]
    open(path, "w").write("\n".join(head) + "\n" + a.text() + "\n".join(desc))
    print(path, "maxv", a.maxv, "maxs", a.maxs, "lines", len(a.lines))


if __name__ == "__main__":
    build("v5.s")
    build("v5_ts.s", ts=True)
    build("v5_tr.s", ts=True, trace=True)
    build("v5_sk37.s", skew=37)
    build("v5_sk261.s", skew=261)
    build("v5_sk37_vpl.s", skew=37, vpol="")
    build("v5_sk37_kpl.s", skew=37, kpol="")
    build("v5_sk37_pl.s", skew=37, pol="")
    build("v5_sk101.s", skew=101)
    build("v5_sk37_wpl.s", skew=37, nt=False, pol=" nt", vpol="")
```
